```python
import torch

def _softmax(x, axis=-1):
    return torch.softmax(x, dim=axis)
def _gelu(x):
    return torch.nn.functional.gelu(x, approximate="tanh")
def _silu(x):
    return torch.nn.functional.silu(x)
def _sigmoid(x):
    return torch.sigmoid(x)
def _layernorm(x, axis=-1, eps=1e-5):
    m = x.mean(dim=axis, keepdim=True)
    v = x.var(dim=axis, keepdim=True, unbiased=False)
    return (x - m) / torch.sqrt(v + eps)
def _scatter_add(tgt, idx, src, axis=0):
    return tgt.clone().index_add_(axis, idx, src)
def _segment_sum(src, seg, n):
    out = torch.zeros((n,) + src.shape[1:], dtype=src.dtype)
    return out.index_add_(0, seg, src)
def _pad(x, pw):
    flat = tuple(v for pair in reversed(pw) for v in pair)
    return torch.nn.functional.pad(x, flat)

kernel_name = 'sequential_preLN__softmax_full_mha__geglu_ffn__prompt'

def setup_inputs():

    _w = (lambda a: (lambda t: t.to(torch.bfloat16) if t.is_floating_point() else t)(torch.as_tensor(a)))
    def _A_setup():
        B, S, D = 1, 2048, 640
        return {
            "x": _w((lambda *s: torch.randn(*s, dtype=torch.bfloat16) * 0.05)(B, S, D)),
            "wqkv": _w((lambda *s: torch.randn(*s, dtype=torch.bfloat16) * 0.05)(D, 3 * D)),
            "wo": _w((lambda *s: torch.randn(*s, dtype=torch.bfloat16) * 0.05)(D, D)),
        }
    _A_in = _A_setup()

    def _B_setup():
        B, S, D, F = 1, 2048, 640, 1536
        return {
            "x": _w((lambda *s: torch.randn(*s, dtype=torch.bfloat16) * 0.05)(B, S, D)),
            "w_gate": _w((lambda *s: torch.randn(*s, dtype=torch.bfloat16) * 0.05)(D, F)),
            "w_up": _w((lambda *s: torch.randn(*s, dtype=torch.bfloat16) * 0.05)(D, F)),
            "w_down": _w((lambda *s: torch.randn(*s, dtype=torch.bfloat16) * 0.05)(F, D)),
        }
    _B_in = _B_setup()

    return {
        "A_x": _A_in["x"],
        "A_wqkv": _A_in["wqkv"],
        "A_wo": _A_in["wo"],
        "B_x": _B_in["x"],
        "B_w_gate": _B_in["w_gate"],
        "B_w_up": _B_in["w_up"],
        "B_w_down": _B_in["w_down"],
    }

def reference(A_x, A_wqkv, A_wo, B_x, B_w_gate, B_w_up, B_w_down):
    def _A_ref(x, wqkv, wo):
        B, S, D = x.shape
        H = 32; Dh = D // H
        qkv = (lambda x, *d: x.permute(*d))((x @ wqkv).reshape(B, S, 3, H, Dh), 2, 0, 3, 1, 4)
        q, k, v = qkv[0], qkv[1], qkv[2]
        scale = Dh ** -0.5
        scores = torch.einsum("bhqd,bhkd->bhqk", q, k) * scale
        p = _softmax(scores, axis=-1)
        o = torch.einsum("bhqk,bhkd->bhqd", p, v)
        return (lambda x, *d: x.permute(*d))(o, 0, 2, 1, 3).reshape(B, S, D) @ wo

    def _B_ref(x, w_gate, w_up, w_down):
        return (_gelu(x @ w_gate) * (x @ w_up)) @ w_down

    x = A_x
    h = x + _A_ref(_layernorm(x, axis=-1), A_wqkv, A_wo)
    h2 = h + _B_ref(_layernorm(h, axis=-1), B_w_gate, B_w_up, B_w_down)
    return h2
```

```python
class Asm:
    def __init__(self):
        self.lines = []
        self.lab = 0
    def __call__(self, s):
        for ln in s.strip("\n").split("\n"):
            ln = ln.rstrip()
            if not ln.strip():
                continue
            t = ln.strip()
            if t.endswith(":") or t.startswith("."):
                self.lines.append(t)
            else:
                self.lines.append("    " + t)
    def label(self, base="L"):
        self.lab += 1
        return f"{base}_{self.lab}"
    def text(self):
        return "\n".join(self.lines) + "\n"

def vr(a, n=1):
    return f"v{a}" if n == 1 else f"v[{a}:{a+n-1}]"
def sr(a, n=1):
    return f"s{a}" if n == 1 else f"s[{a}:{a+n-1}]"

def srd(A, d, ptr, nbytes, add=0):
    if add:
        A(f"s_add_u32 s{d}, s{ptr}, {add:#x}")
        A(f"s_addc_u32 s{d+1}, s{ptr+1}, 0")
    else:
        A(f"s_mov_b32 s{d}, s{ptr}")
        A(f"s_mov_b32 s{d+1}, s{ptr+1}")
    A(f"s_mov_b32 s{d+2}, {nbytes:#x}")
    A(f"s_mov_b32 s{d+3}, 0x20000")

def kernel_begin(A, name):
    A(f".globl {name}")
    A(".p2align 8")
    A(f".type {name},@function")
    A(f"{name}:")

def kernel_desc(name, nvgpr, nsgpr=102, accum=None):
    if accum is None:
        accum = (nvgpr + 3) // 4 * 4
    return f""".p2align 6
.amdhsa_kernel {name}
  .amdhsa_next_free_vgpr {nvgpr}
  .amdhsa_next_free_sgpr {nsgpr}
  .amdhsa_accum_offset {accum}
  .amdhsa_group_segment_fixed_size 0
  .amdhsa_kernarg_size 80
  .amdhsa_user_sgpr_count 2
  .amdhsa_user_sgpr_kernarg_segment_ptr 1
  .amdhsa_system_sgpr_workgroup_id_x 1
  .amdhsa_float_denorm_mode_32 3
  .amdhsa_float_denorm_mode_16_64 3
.end_amdhsa_kernel
"""
import struct
def f32(x):
    return "0x%08x" % struct.unpack("<I", struct.pack("<f", x))[0]
```

```python
from asmlib import *
import math
QF = 0x000000
KV = 0x300000
OF = 0x800000
HF = 0xB00000
GF = 0xE00000
FL = 0x1430000
WS_USED = 0x1500000
EPS = 1e-5
QSCALE = (20 ** -0.5) * math.log2(math.e)

def gen_k1(A, name="qkv_kernel"):
    NST = 4
    STG = 32768
    TAB = NST * STG
    kernel_begin(A, name)
    A(f"""
    s_cmp_ge_u32 s2, 256
    s_cbranch_scc1 K1_end
    s_load_dwordx4 s[4:7], s[0:1], 0
    s_load_dwordx2 s[8:9], s[0:1], 72
    v_lshrrev_b32 v1, 6, v0
    v_and_b32 v2, 63, v0              ; lane
    s_and_b32 s3, s2, 7               ; xcd
    v_readfirstlane_b32 s24, v1       ; wave
    s_lshr_b32 s10, s2, 3             ; idx
    s_and_b32 s11, s10, 3             ; r
    s_lshr_b32 s10, s10, 2            ; c
    s_lshr_b32 s27, s3, 1
    s_lshl_b32 s27, s27, 2
    s_add_u32 s27, s27, s11           ; rb
    s_and_b32 s28, s3, 1
    s_lshl_b32 s28, s28, 3
    s_add_u32 s28, s28, s10           ; cb
    s_cmp_ge_u32 s28, 15
    s_cbranch_scc1 K1_end
    s_mul_i32 s31, s11, 5
    s_add_u32 s31, s31, 1
    s_lshr_b32 s31, s31, 1
    s_add_u32 s31, s31, s10
    s_sub_u32 s11, s31, 10
    s_cmp_ge_u32 s31, 10
    s_cselect_b32 s31, s11, s31
    s_lshr_b32 s25, s24, 1            ; wr
    s_and_b32 s26, s24, 1             ; wc
    s_lshl_b32 s29, s27, 7
    s_lshl_b32 s11, s24, 5
    s_add_u32 s29, s29, s11
    s_mul_i32 s29, s29, 1280
    s_mul_i32 s30, s24, {16*3840}
    s_lshl_b32 s11, s28, 8
    s_add_u32 s30, s30, s11
    s_lshl_b32 s33, s24, 12
    s_mov_b32 s32, 0
    s_mov_b32 s37, 0x3f803f80
    s_mov_b32 s36, {STG}
    v_lshrrev_b32 v3, 3, v2           ; l>>3
    v_lshrrev_b32 v4, 4, v2           ; l>>4
    v_mul_u32_u24 v5, 1280, v3
    v_and_b32 v6, 7, v2
    v_xor_b32 v6, v6, v4
    v_lshl_add_u32 v8, v6, 4, v5      ; vA[0]
    v_xor_b32 v6, 4, v6
    v_lshl_add_u32 v9, v6, 4, v5
    v_add_u32 v9, {8*1280-1024}, v9   ; vA[1]
    v_add_u32 v10, {16*1280-2048}, v8 ; vA[2]
    v_add_u32 v11, {16*1280-2048}, v9 ; vA[3]
    v_mul_u32_u24 v5, 3840, v4
    v_and_b32 v6, 15, v2
    v_lshlrev_b32 v7, 2, v4
    v_xor_b32 v6, v6, v7
    v_lshl_add_u32 v12, v6, 4, v5     ; vB[0]
    v_add_u32 v13, {4*3840-1024}, v12
    v_add_u32 v14, {8*3840-2048}, v12
    v_add_u32 v15, {12*3840-3072}, v12
    s_waitcnt lgkmcnt(0)
    """)
    srd(A, 12, 4, 2048*640*2)
    srd(A, 16, 6, 640*1920*2)
    srd(A, 20, 8, WS_USED)
    def dma():
        A(f"""
        s_lshl_b32 s10, s31, 7
        s_add_u32 s10, s10, s29
        s_mul_i32 s11, s31, {64*3840}
        s_add_u32 s11, s11, s30
        s_cmp_lt_u32 s32, 10
        s_cselect_b32 s10, s10, 0x40000000
        s_cselect_b32 s11, s11, 0x40000000
        s_mov_b32 m0, s33
        s_add_u32 s32, s32, 1
        buffer_load_dwordx4 v8, s[12:15], s10 offen lds
        buffer_load_dwordx4 v9, s[12:15], s10 offen offset:1024 lds
        buffer_load_dwordx4 v10, s[12:15], s10 offen offset:2048 lds
        buffer_load_dwordx4 v11, s[12:15], s10 offen offset:3072 lds
        s_add_u32 m0, s33, 16384
        s_add_u32 s31, s31, 1
        buffer_load_dwordx4 v12, s[16:19], s11 offen lds
        buffer_load_dwordx4 v13, s[16:19], s11 offen offset:1024 lds
        buffer_load_dwordx4 v14, s[16:19], s11 offen offset:2048 lds
        buffer_load_dwordx4 v15, s[16:19], s11 offen offset:3072 lds
        s_cmp_eq_u32 s31, 10
        s_cselect_b32 s31, 0, s31
        s_add_u32 s33, s33, {STG}
        s_and_b32 s33, s33, {NST*STG-1}
        """)
    A("K1_pro:")
    dma()
    A(f"s_cmp_lt_u32 s32, {NST-1}")
    A("s_cbranch_scc1 K1_pro")
    RA0, RA1, RB0, RB1 = 16, 20, 24, 25
    SX, SQ, CSA = 26, 28, 30
    XF, WF, ACC = 32, 48, 64
    A(f"""
    v_and_b32 v3, 31, v2              ; t
    v_lshrrev_b32 v4, 5, v2           ; h
    s_lshl_b32 s10, s25, 1
    s_add_u32 s38, s10, s26
    s_xor_b32 s39, s38, 1             ; A1
    s_lshl_b32 s10, s26, 1
    s_add_u32 s40, s10, s25
    s_xor_b32 s41, s40, 1             ; B1
    v_bfe_u32 v5, v2, 1, 3            ; (t>>1)&7
    v_xor_b32 v5, v5, v4
    v_lshlrev_b32 v5, 4, v5
    v_lshl_add_u32 v5, v3, 7, v5      ; t*128 + ((h^g)*16)
    s_lshl_b32 s10, s38, 12
    v_add_u32 v{RA0}, s10, v5
    v_xor_b32 v{RA0+1}, 32, v{RA0}
    v_xor_b32 v{RA0+2}, 64, v{RA0}
    v_xor_b32 v{RA0+3}, 96, v{RA0}
    v_xor_b32 v{RA1}, 0x1000, v{RA0}
    v_xor_b32 v{RA1+1}, 0x1000, v{RA0+1}
    v_xor_b32 v{RA1+2}, 0x1000, v{RA0+2}
    v_xor_b32 v{RA1+3}, 0x1000, v{RA0+3}
    v_bfe_u32 v5, v2, 2, 2            ; r
    v_lshl_add_u32 v6, v4, 3, v5      ; 8h+r
    v_lshlrev_b32 v6, 8, v6
    v_xor_b32 v7, s40, v5             ; j^r
    v_lshl_add_u32 v6, v7, 6, v6
    v_bfe_u32 v7, v2, 4, 1
    v_lshl_add_u32 v6, v7, 5, v6
    v_and_b32 v7, 3, v2
    v_lshl_add_u32 v6, v7, 3, v6
    v_add_u32 v{RB0}, 16384, v6
    v_xor_b32 v{RB1}, 64, v{RB0}
    """)
    for r in range(SX, ACC + 64):
        A(f"v_mov_b32 v{r}, 0")
    A("s_mov_b32 s34, 0")
    A("s_cmp_ge_u32 s28, 10")
    A("s_cbranch_scc1 K1_loopV")
    def reads(ks, b):
        A(f"ds_read_b128 {vr(XF+8*b,4)}, v{RA0+ks}")
        A(f"ds_read_b64_tr_b16 {vr(WF+8*b,2)}, v{RB0} offset:{ks*4096}")
        A(f"ds_read_b64_tr_b16 {vr(WF+8*b+2,2)}, v{RB0} offset:{ks*4096+1024}")
        A(f"ds_read_b128 {vr(XF+8*b+4,4)}, v{RA1+ks}")
        A(f"ds_read_b64_tr_b16 {vr(WF+8*b+4,2)}, v{RB1} offset:{ks*4096}")
        A(f"ds_read_b64_tr_b16 {vr(WF+8*b+6,2)}, v{RB1} offset:{ks*4096+1024}")
    def mm(b, vmode, extra=None):
        st = []
        for d in range(4):
            st.append(f"v_dot2c_f32_bf16 v{SX+(d&1)}, s37, v{XF+8*b+d}")
            st.append(f"v_dot2c_f32_bf16 v{SQ+(d&1)}, v{XF+8*b+d}, v{XF+8*b+d}")
            st.append(f"v_dot2c_f32_bf16 v{CSA+(d&1)}, s37, v{WF+8*b+d}")
        ex = list(extra or [])
        for n, (i, j) in enumerate(((0,0),(0,1),(1,0),(1,1))):
            acc = vr(ACC + 32*i + 16*j, 16)
            x = vr(XF+8*b+4*i, 4); w = vr(WF+8*b+4*j, 4)
            if vmode: A(f"v_mfma_f32_32x32x16_bf16 {acc}, {x}, {w}, {acc}")
            else:     A(f"v_mfma_f32_32x32x16_bf16 {acc}, {w}, {x}, {acc}")
            for s in st[3*n:3*n+3]: A(s)
            k = (len(ex) + 3 - n) // (4 - n) if ex else 0
            for s in ex[:k]: A(s)
            ex = ex[k:]
    for vmode, lab in ((0, "K1_loopQ"), (1, "K1_loopV")):
        A(f"{lab}:")
        A(f"s_waitcnt vmcnt({8*(NST-2)}) lgkmcnt(0)")
        A("s_barrier")
        reads(0, 0)
        dma()
        mm(1, vmode)
        reads(1, 1)
        A("s_waitcnt lgkmcnt(6)")
        mm(0, vmode)
        reads(2, 0)
        A("s_waitcnt lgkmcnt(6)")
        mm(1, vmode)
        reads(3, 1)
        A(f"""
        s_add_u32 s34, s34, 1
        s_and_b32 s10, s34, {NST-1}
        s_cmp_eq_u32 s10, 0
        s_cselect_b32 s35, {(-(NST-1)*STG) & 0xffffffff:#x}, s36
        s_waitcnt lgkmcnt(6)
        """)
        mm(0, vmode, extra=[f"v_add_u32 v{r}, s35, v{r}" for r in range(RA0, RB1+1)])
        A("s_cmp_lt_u32 s34, 10")
        A(f"s_cbranch_scc1 {lab}")
        A("s_waitcnt lgkmcnt(0)")
        mm(1, vmode)
        if vmode == 0:
            A("s_branch K1_epi")
    A("K1_epi:")
    A(f"""
    s_nop 3
    v_add_f32 v{SX}, v{SX}, v{SX+1}
    v_add_f32 v{SQ}, v{SQ}, v{SQ+1}
    v_add_f32 v{CSA}, v{CSA}, v{CSA+1}
    v_mov_b32 v{SX+1}, v{SX}
    v_mov_b32 v{SQ+1}, v{SQ}
    v_mov_b32 v{CSA+1}, v{CSA}
    s_nop 1
    v_permlane32_swap_b32 v{SX}, v{SX+1}
    v_permlane32_swap_b32 v{SQ}, v{SQ+1}
    v_permlane32_swap_b32 v{CSA}, v{CSA+1}
    s_nop 1
    v_add_f32 v{SX}, v{SX}, v{SX+1}
    v_add_f32 v{SQ}, v{SQ}, v{SQ+1}
    v_add_f32 v{CSA}, v{CSA}, v{CSA+1}
    v_mul_f32 v{SX}, {f32(1/640)}, v{SX}   ; mean
    v_mul_f32 v{SQ}, {f32(1/640)}, v{SQ}
    v_fma_f32 v{SQ}, -v{SX}, v{SX}, v{SQ}  ; var
    v_max_f32 v{SQ}, 0, v{SQ}
    v_add_f32 v{SQ}, {f32(EPS)}, v{SQ}
    v_rsq_f32 v{SQ}, v{SQ}
    s_cmp_lt_u32 s28, 5
    s_cselect_b32 s10, {f32(QSCALE)}, 1.0
    v_mul_f32 v{SQ}, s10, v{SQ}            ; a
    v_mul_f32 v{SX}, v{SX}, v{SQ}
    v_sub_f32 v{SX}, 0, v{SX}              ; b = -mean*a
    s_lshl_b32 s10, s38, 7
    s_add_u32 s10, s10, {TAB}
    v_lshl_add_u32 v5, v3, 2, s10
    s_lshl_b32 s10, s40, 7
    s_add_u32 s10, s10, {TAB+1024}
    v_lshl_add_u32 v6, v3, 2, s10
    ds_write_b32 v5, v{SQ}
    ds_write_b32 v5, v{SX} offset:512
    ds_write_b32 v6, v{CSA}
    s_sub_u32 s10, s28, 5
    s_cmp_ge_u32 s28, 5
    s_cselect_b32 s42, s10, s28
    s_sub_u32 s10, s28, 10
    s_cmp_ge_u32 s28, 10
    s_cselect_b32 s42, s10, s42
    s_lshl_b32 s43, s27, 2
    s_add_u32 s44, s43, s39
    s_add_u32 s43, s43, s38
    s_waitcnt lgkmcnt(0)
    s_barrier
    s_cmp_ge_u32 s28, 10
    s_cbranch_scc1 K1_epiV
    """)
    CSR = 32
    A(f"""
    v_xor_b32 v5, 128, v5
    ds_read_b32 v{SQ+1}, v5                ; a of A1
    ds_read_b32 v{SX+1}, v5 offset:512     ; b of A1
    s_lshl_b32 s10, s40, 7
    s_add_u32 s10, s10, {TAB+1024}
    v_lshl_add_u32 v6, v4, 4, s10
    v_xor_b32 v7, 128, v6
    """)
    for j, a in ((0, 6), (1, 7)):
        for g in range(4):
            A(f"ds_read_b128 {vr(CSR+16*j+4*g,4)}, v{a} offset:{32*g}")
    A(f"""
    s_cmp_lt_u32 s28, 5
    s_cselect_b32 s46, 1, 2
    s_mul_i32 s45, s46, 81920
    s_mul_i32 s46, s46, 1280
    s_cselect_b32 s47, {QF}, {KV}
    s_mul_i32 s43, s43, s46
    s_add_u32 s43, s43, s47
    s_mul_i32 s44, s44, s46
    s_add_u32 s44, s44, s47
    v_lshlrev_b32 v8, 4, v3                ; t*16
    v_lshlrev_b32 v9, 3, v3
    v_add_u32 v9, 1024, v9                 ; 1024+t*8
    s_lshl_b32 s48, s42, 5
    """)
    for j in range(2):
        A(f"s_lshl_b32 s10, s{40+j}, 3")
        A("s_add_u32 s10, s10, s48")
        for g in range(4):
            d = 16 + 4*j + g
            A(f"""
            v_add_u32 v10, s10, v4            ; q4
            v_mul_u32_u24 v11, 205, v10
            v_lshrrev_b32 v11, 10, v11        ; head
            v_mul_u32_u24 v12, 5, v11
            v_sub_u32 v10, v10, v12           ; dd
            v_lshrrev_b32 v12, 1, v10
            v_lshl_add_u32 v12, v12, 9, v8
            v_and_b32 v13, 1, v10
            v_lshl_add_u32 v12, v13, 3, v12
            v_cmp_eq_u32 vcc, 4, v10
            v_mul_lo_u32 v11, v11, s45
            s_add_u32 s10, s10, 2
            v_cndmask_b32 v12, v12, v9, vcc
            v_add_u32 v{d}, v11, v12
            """)
    A("s_waitcnt lgkmcnt(0)")
    for i in range(2):
        for j in range(2):
            for g in range(4):
                base = ACC + 32*i + 16*j + 4*g
                t = 8 + 4*(g & 1)
                for e in range(4):
                    A(f"v_mul_f32 v{t+e}, v{SX+i}, v{CSR+16*j+4*g+e}")
                for e in range(4):
                    A(f"v_fma_f32 v{base+e}, v{base+e}, v{SQ+i}, v{t+e}")
                A(f"v_cvt_pk_bf16_f32 v{base}, v{base}, v{base+1}")
                A(f"v_cvt_pk_bf16_f32 v{base+1}, v{base+2}, v{base+3}")
                A(f"buffer_store_dwordx2 {vr(base,2)}, v{16+4*j+g}, s[20:23], s{43+i} offen")
    A("s_endpgm")
    A("K1_epiV:")
    A(f"""
    v_xor_b32 v6, 128, v6
    ds_read_b32 v{CSA+1}, v6
    s_lshl_b32 s10, s38, 7
    s_add_u32 s10, s10, {TAB}
    v_lshl_add_u32 v6, v4, 4, s10
    v_xor_b32 v7, 128, v6
    s_mul_i32 s43, s43, 2560
    s_add_u32 s43, s43, {KV}
    s_mul_i32 s44, s44, 2560
    s_add_u32 s44, s44, {KV}
    s_lshl_b32 s48, s42, 7
    s_mov_b32 s45, 163840
    v_mul_u32_u24 v9, 320, v4
    v_add_u32 v9, 1280, v9                 ; 1280 + h*320
    """)
    for j in range(2):
        A(f"""
        s_lshl_b32 s10, s{40+j}, 5
        s_add_u32 s10, s10, s48
        v_add_u32 v10, s10, v3             ; n'
        v_mul_u32_u24 v11, 3277, v10
        v_lshrrev_b32 v11, 16, v11         ; head
        v_mul_u32_u24 v12, 20, v11
        v_sub_u32 v10, v10, v12            ; d
        v_mul_lo_u32 v11, v11, s45
        v_lshl_add_u32 v10, v10, 4, v9
        v_add_u32 v{16+j}, v10, v11
        """)
    for i in range(2):
        a = 6 + i
        for g in range(4):
            A(f"ds_read_b128 {vr(32+4*g,4)}, v{a} offset:{32*g}")
            A(f"ds_read_b128 {vr(48+4*g,4)}, v{a} offset:{512+32*g}")
        A("s_waitcnt lgkmcnt(0)")
        for j in range(2):
            base = ACC + 32*i + 16*j
            for m in range(2):
                for e in range(8):
                    r = 8*m + e
                    A(f"v_mul_f32 v{8+e}, v{48+r}, v{CSA+j}")
                for e in range(8):
                    r = 8*m + e
                    A(f"v_fma_f32 v{base+r}, v{base+r}, v{32+r}, v{8+e}")
                for e in range(4):
                    A(f"v_cvt_pk_bf16_f32 v{base+8*m+e}, v{base+8*m+2*e}, v{base+8*m+2*e+1}")
                A(f"buffer_store_dwordx4 {vr(base+8*m,4)}, v{16+j}, s[20:23], s{43+i} offen offset:{640*m}")
    A("K1_end:")
    A("s_endpgm")
    return dict(name=name, grid=256, block=256, lds=TAB+2048, nvgpr=128)
```

```python
from asmlib import *
from k1 import QF, KV, OF, HF, GF, FL, WS_USED

def gen_attn(A, name="attn_kernel"):
    kernel_begin(A, name)
    Q0, Q1 = 8, 12
    K0, K1 = 16, 20
    V0, V1 = 24, 28
    P0, P1 = 32, 36
    AK0, AK1, AV = 40, 41, 42
    NEGM = 48
    SA, SB = 64, 80
    O = 96
    A(f"""
    s_cmp_ge_u32 s2, 256
    s_cbranch_scc1 K2_end
    s_load_dwordx2 s[8:9], s[0:1], 72
    v_lshrrev_b32 v1, 6, v0
    v_and_b32 v2, 63, v0              ; lane
    s_and_b32 s25, s2, 7              ; g
    v_readfirstlane_b32 s24, v1       ; wave
    s_lshr_b32 s26, s2, 3             ; head
    v_and_b32 v3, 31, v2              ; t
    v_lshrrev_b32 v4, 5, v2           ; h
    v_lshlrev_b32 v{AK0}, 4, v2       ; l*16
    v_lshlrev_b32 v{AK1}, 3, v3
    v_add_u32 v{AK1}, 1024, v{AK1}    ; 1024 + t*8
    v_mul_u32_u24 v5, 20, v4
    v_add_u32 v5, v5, v3
    v_lshlrev_b32 v5, 4, v5
    v_add_u32 v{AV}, 1280, v5         ; 1280 + (h*20+d)*16
    s_lshl_b32 s27, s25, 3
    s_add_u32 s27, s27, s24           ; q tile
    s_lshl_b32 s10, s26, 6
    s_add_u32 s10, s10, s27
    s_mul_i32 s28, s10, 1280
    s_add_u32 s28, s28, {QF}          ; Q soffset
    s_mul_i32 s29, s26, 163840
    s_add_u32 s29, s29, {KV}
    s_lshl_b32 s30, s24, 10
    s_mov_b32 s32, 0x000fffff
    s_mov_b32 s33, 0x000fffff
    s_waitcnt lgkmcnt(0)
    """)
    srd(A, 20, 8, WS_USED)
    A(f"""
    buffer_load_dwordx4 {vr(Q0,4)}, v{AK0}, s[20:23], s28 offen
    buffer_load_dwordx2 {vr(Q1,2)}, v{AK1}, s[20:23], s28 offen
    s_mov_b32 s31, 20
    K2_dma:
    s_mov_b32 m0, s30
    s_add_u32 s10, s29, s30
    buffer_load_dwordx4 v{AK0}, s[20:23], s10 offen lds
    s_add_u32 s30, s30, 8192
    s_sub_u32 s31, s31, 1
    s_cmp_lg_u32 s31, 0
    s_cbranch_scc1 K2_dma
    """)
    for r in range(8):
        A(f"v_mov_b32 v{V0+r}, 0x3f803f80")
    for r in range(16):
        A(f"v_mov_b32 v{O+r}, 0")
    for r in range(4):
        A(f"v_mov_b32 v{P1+r}, 0")
    A(f"""
    v_cmp_gt_u32 vcc, 32, v2
    s_waitcnt vmcnt(16)
    v_cndmask_b32 v{Q1}, 0, v{Q1}, vcc
    v_cndmask_b32 v{Q1+1}, 0, v{Q1+1}, vcc
    s_barrier
    ds_read_b128 {vr(K0,4)}, v{AK0}
    ds_read_b64 {vr(K1,2)}, v{AK1}
    s_waitcnt lgkmcnt(0)
    v_mfma_f32_32x32x16_bf16 {vr(SA,16)}, {vr(K0,4)}, {vr(Q0,4)}, 0
    v_mfma_f32_32x32x8_bf16 {vr(SA,16)}, {vr(K1,2)}, {vr(Q1,2)}, {vr(SA,16)}
    ds_read_b128 {vr(K0,4)}, v{AK0} offset:2560
    ds_read_b64 {vr(K1,2)}, v{AK1} offset:2560
    s_nop 9
    v_max3_f32 v5, v{SA}, v{SA+1}, v{SA+2}
    v_max3_f32 v6, v{SA+3}, v{SA+4}, v{SA+5}
    v_max3_f32 v5, v5, v{SA+6}, v{SA+7}
    v_max3_f32 v6, v6, v{SA+8}, v{SA+9}
    v_max3_f32 v5, v5, v{SA+10}, v{SA+11}
    v_max3_f32 v6, v6, v{SA+12}, v{SA+13}
    v_max3_f32 v5, v5, v{SA+14}, v{SA+15}
    v_max_f32 v5, v5, v6
    v_mov_b32 v6, v5
    s_nop 1
    v_permlane32_swap_b32 v5, v6
    s_nop 1
    v_max_f32 v5, v5, v6
    """)
    for r in range(16):
        A(f"v_sub_f32 v{NEGM+r}, 0, v5")
    for r in range(16):
        A(f"v_sub_f32 v{SA+r}, v{SA+r}, v5")
    A("s_mov_b32 s31, 0          ; iteration")
    A("K2_loop:")
    for u in range(4):
        S, Sn = (SA, SB) if u % 2 == 0 else (SB, SA)
        off = 2560 * u
        def ex(a, b):
            for r in range(a, b):
                A(f"v_exp_f32 v{S+r}, v{S+r}")
        def cv(P, a):
            for e in range(4):
                A(f"v_cvt_pk_bf16_f32 v{P+e}, v{S+a+2*e}, v{S+a+2*e+1}")
        A(f"v_mfma_f32_32x32x16_bf16 {vr(O,16)}, {vr(V1,4)}, {vr(P1,4)}, {vr(O,16)}")
        A(f"s_mov_b64 exec, s[32:33]")
        A(f"ds_read_b128 {vr(V0,4)}, v{AV} offset:{off}")
        A(f"ds_read_b128 {vr(V1,4)}, v{AV} offset:{off+640}")
        A(f"s_mov_b64 exec, -1")
        ex(0, 5)
        A("s_waitcnt lgkmcnt(2)")
        A(f"v_mfma_f32_32x32x16_bf16 {vr(Sn,16)}, {vr(K0,4)}, {vr(Q0,4)}, {vr(NEGM,16)}")
        ex(5, 8)
        cv(P0, 0)
        A(f"v_mfma_f32_32x32x8_bf16 {vr(Sn,16)}, {vr(K1,2)}, {vr(Q1,2)}, {vr(Sn,16)}")
        A(f"ds_read_b128 {vr(K0,4)}, v{AK0} offset:{off+2*2560}")
        A(f"ds_read_b64 {vr(K1,2)}, v{AK1} offset:{off+2*2560}")
        ex(8, 13)
        A("s_waitcnt lgkmcnt(2)")
        A(f"v_mfma_f32_32x32x16_bf16 {vr(O,16)}, {vr(V0,4)}, {vr(P0,4)}, {vr(O,16)}")
        ex(13, 16)
        if u == 3:
            A(f"v_add_u32 v{AK0}, 10240, v{AK0}")
            A(f"v_add_u32 v{AK1}, 10240, v{AK1}")
            A(f"v_add_u32 v{AV}, 10240, v{AV}")
            A("s_add_u32 s31, s31, 1")
            A("s_and_b32 s10, s31, 1")
        cv(P1, 8)
        if u < 3:
            A("s_nop 1")
    A("s_cbranch_scc1 K2_loop_nop")
    segs = {2: 14, 4: 11, 6: 9, 8: 6, 10: 4, 12: 1, 14: 0}
    for it, n in segs.items():
        A(f"s_cmp_lg_u32 s31, {it}")
        A(f"s_cbranch_scc1 K2_sg{it}")
        A(f"s_waitcnt vmcnt({n})")
        A("s_barrier")
        A("s_branch K2_loop")
        A(f"K2_sg{it}:")
    A("s_branch K2_done")
    A("K2_loop_nop:")
    A("s_branch K2_loop")
    A("K2_done:")
    A(f"v_mfma_f32_32x32x16_bf16 {vr(O,16)}, {vr(V1,4)}, {vr(P1,4)}, {vr(O,16)}")
    A(f"""
    s_mul_i32 s10, s26, 5
    v_lshrrev_b32 v5, 4, v3           ; t>>4
    s_lshl_b32 s11, s27, 1
    v_add_u32 v5, s11, v5             ; rt16
    v_mul_u32_u24 v5, {20*1024}, v5
    v_and_b32 v6, 15, v3
    v_lshl_add_u32 v5, v6, 4, v5
    """)
    for g in range(3):
        A(f"""
        v_add_u32 v6, s10, v4
        v_lshrrev_b32 v7, 3, v6
        v_lshl_add_u32 v{16+g}, v7, 10, v5
        v_bfe_u32 v7, v6, 2, 1
        v_lshl_add_u32 v{16+g}, v7, 9, v{16+g}
        v_and_b32 v7, 1, v6
        v_lshl_add_u32 v{16+g}, v7, 8, v{16+g}
        v_bfe_u32 v7, v6, 1, 1
        v_lshl_add_u32 v{16+g}, v7, 3, v{16+g}
        s_add_u32 s10, s10, 2
        """)
    A(f"""
    v_add_f32 v6, abs(v{O}), abs(v{O+1})
    v_add_f32 v7, abs(v{O+2}), abs(v{O+3})
    v_add_f32 v6, v6, abs(v{O+4})
    v_add_f32 v7, v7, abs(v{O+5})
    v_add_f32 v6, v6, abs(v{O+6})
    v_add_f32 v7, v7, abs(v{O+7})
    v_add_f32 v6, v6, abs(v{O+8})
    v_add_f32 v7, v7, abs(v{O+9})
    v_add_f32 v6, v6, abs(v{O+10})
    v_add_f32 v7, v7, abs(v{O+11})
    v_add_f32 v6, v6, v7
    v_cmp_ngt_f32 vcc, {f32(2.0**64)}, v{O+12}
    s_mov_b64 s[34:35], vcc
    v_cmp_ngt_f32 vcc, {f32(2.0**126)}, v6
    s_or_b64 s[34:35], s[34:35], vcc
    s_cbranch_scc1 K2_slow
    K2_out:
    v_rcp_f32 v6, v{O+12}
    s_mov_b32 s10, {OF}
    """)
    for r in range(12):
        A(f"v_mul_f32 v{O+r}, v{O+r}, v6")
    for g in range(3):
        A(f"v_cvt_pk_bf16_f32 v{O+4*g}, v{O+4*g}, v{O+4*g+1}")
        A(f"v_cvt_pk_bf16_f32 v{O+4*g+1}, v{O+4*g+2}, v{O+4*g+3}")
    A(f"buffer_store_dwordx2 {vr(O,2)}, v16, s[20:23], s10 offen")
    A(f"buffer_store_dwordx2 {vr(O+4,2)}, v17, s[20:23], s10 offen")
    A("s_mov_b32 exec_hi, 0")
    A(f"buffer_store_dwordx2 {vr(O+8,2)}, v18, s[20:23], s10 offen")
    A("K2_end:")
    A("s_endpgm")
    A("K2_slow:")
    KS0, KS1 = 44, 20
    A(f"""
    v_lshlrev_b32 v{AK0}, 4, v2
    v_lshlrev_b32 v{AK1}, 3, v3
    v_add_u32 v{AK1}, 1024, v{AK1}
    v_subrev_u32 v{AV}, {64*2560}, v{AV}
    v_mov_b32 v5, 0xff800000
    s_mov_b32 s31, 0
    s_mov_b32 s10, s29
    """)
    for r in range(16):
        A(f"v_mov_b32 v{O+r}, 0")
    A("K2_sloop:")
    A(f"""
    buffer_load_dwordx4 {vr(KS0,4)}, v{AK0}, s[20:23], s10 offen
    buffer_load_dwordx2 {vr(KS1,2)}, v{AK1}, s[20:23], s10 offen
    s_mov_b64 exec, s[32:33]
    buffer_load_dwordx4 {vr(V0,4)}, v{AV}, s[20:23], s10 offen
    buffer_load_dwordx4 {vr(V1,4)}, v{AV}, s[20:23], s10 offen offset:640
    s_mov_b64 exec, -1
    s_waitcnt vmcnt(0)
    v_mfma_f32_32x32x16_bf16 {vr(SA,16)}, {vr(KS0,4)}, {vr(Q0,4)}, 0
    v_mfma_f32_32x32x8_bf16 {vr(SA,16)}, {vr(KS1,2)}, {vr(Q1,2)}, {vr(SA,16)}
    s_nop 11
    v_max3_f32 v6, v{SA}, v{SA+1}, v5
    """)
    for r in range(2, 16, 2):
        A(f"v_max3_f32 v6, v{SA+r}, v{SA+r+1}, v6")
    A(f"""
    v_mov_b32 v7, v6
    s_nop 1
    v_permlane32_swap_b32 v6, v7
    s_nop 1
    v_max_f32 v6, v6, v7
    v_sub_f32 v7, v5, v6
    v_exp_f32 v7, v7                  ; alpha
    v_mov_b32 v5, v6
    """)
    for r in range(16):
        A(f"v_mul_f32 v{O+r}, v{O+r}, v7")
    for r in range(16):
        A(f"v_sub_f32 v{SA+r}, v{SA+r}, v6")
    for r in range(16):
        A(f"v_exp_f32 v{SA+r}, v{SA+r}")
    A("s_nop 0")
    for e in range(8):
        A(f"v_cvt_pk_bf16_f32 v{P0+e}, v{SA+2*e}, v{SA+2*e+1}")
    A(f"""
    s_nop 1
    v_mfma_f32_32x32x16_bf16 {vr(O,16)}, {vr(V0,4)}, {vr(P0,4)}, {vr(O,16)}
    v_mfma_f32_32x32x16_bf16 {vr(O,16)}, {vr(V1,4)}, {vr(P1,4)}, {vr(O,16)}
    s_add_u32 s10, s10, 2560
    s_add_u32 s31, s31, 1
    s_cmp_lt_u32 s31, 64
    s_nop 8
    s_cbranch_scc1 K2_sloop
    s_nop 3
    s_branch K2_out
    """)
    return dict(name=name, grid=256, block=512, lds=163840, nvgpr=112)
```

```python
from asmlib import *
from k1 import QF, KV, OF, HF, GF, FL, WS_USED, EPS
import math

def common_head(A, endlab):
    A(f"""
    s_cmp_ge_u32 s2, 256
    s_cbranch_scc1 {endlab}
    v_lshrrev_b32 v1, 6, v0
    v_and_b32 v2, 63, v0              ; lane
    s_and_b32 s25, s2, 7              ; g
    v_readfirstlane_b32 s24, v1       ; wave
    s_lshr_b32 s26, s2, 3             ; idx
    """)

def w80_voffs(A, dst):
    for i in range(5):
        A(f"""
        v_add_u32 v5, {64*i}, v2
        v_mul_u32_u24 v6, 205, v5
        v_lshrrev_b32 v6, 11, v6          ; e/10
        v_mul_u32_u24 v7, 10, v6
        v_sub_u32 v5, v5, v7              ; e%10
        v_mul_u32_u24 v6, 1280, v6
        v_lshl_add_u32 v{dst+i}, v5, 4, v6
        """)
        if 0 < i < 4:
            A(f"v_subrev_u32 v{dst+i}, {1024*i}, v{dst+i}")

def w80_group(A, vo, srd_, s_lds, s_off):
    A(f"""
    s_mov_b32 m0, {s_lds}
    s_nop 0
    buffer_load_dwordx4 v{vo}, {srd_}, {s_off} offen lds
    buffer_load_dwordx4 v{vo+1}, {srd_}, {s_off} offen offset:1024 lds
    buffer_load_dwordx4 v{vo+2}, {srd_}, {s_off} offen offset:2048 lds
    buffer_load_dwordx4 v{vo+3}, {srd_}, {s_off} offen offset:3072 lds
    s_add_u32 m0, {s_lds}, 4096
    s_nop 0
    buffer_load_dwordx4 v{vo+4}, {srd_}, {s_off} offen lds
    """)

def w80_raddr(A, dst):
    A(f"""
    v_lshrrev_b32 v5, 5, v2
    v_lshlrev_b32 v5, 4, v5           ; 16*(gq>>1)
    v_bfe_u32 v6, v2, 4, 1
    v_lshl_add_u32 v5, v6, 2, v5      ; +4*(gq&1)
    v_bfe_u32 v6, v2, 2, 2
    v_add_u32 v5, v5, v6              ; + r
    v_mul_u32_u24 v5, 160, v5
    v_and_b32 v6, 3, v2
    v_lshl_add_u32 v{dst}, v6, 3, v5
    """)

def w80_steps(A, nsteps, RA, WF, AF, ACC, af0=0):
    def rd(ks):
        b = WF + 20*(ks & 1)
        for ct in range(5):
            A(f"ds_read_b64_tr_b16 {vr(b+4*ct,2)}, v{RA} offset:{ks*5120+ct*32}")
            A(f"ds_read_b64_tr_b16 {vr(b+4*ct+2,2)}, v{RA} offset:{ks*5120+ct*32+1280}")
    rd(0)
    for ks in range(nsteps):
        if ks + 1 < nsteps:
            rd(ks+1)
            A("s_waitcnt lgkmcnt(10)")
        else:
            A("s_waitcnt lgkmcnt(0)")
        b = WF + 20*(ks & 1)
        for ct in range(5):
            A(f"v_mfma_f32_16x16x32_bf16 {vr(ACC+4*ct,4)}, {vr(b+4*ct,4)}, {vr(AF+4*(af0+ks),4)}, {vr(ACC+4*ct,4)}")

def gen_wo(A, name="wo_kernel"):
    kernel_begin(A, name)
    common_head(A, "K3_end")
    VO, RA, XR, ACC, WF, AF = 8, 13, 14, 24, 44, 84
    RED = 122880
    A(f"""
    s_load_dwordx2 s[4:5], s[0:1], 0
    s_load_dwordx2 s[6:7], s[0:1], 16
    s_load_dwordx2 s[8:9], s[0:1], 72
    s_lshr_b32 s27, s26, 3            ; rt4
    s_and_b32 s28, s26, 7             ; cbk
    s_and_b32 s29, s24, 3             ; rt
    s_lshr_b32 s30, s24, 2            ; kh
    s_lshl_b32 s31, s25, 4
    s_lshl_b32 s10, s27, 2
    s_add_u32 s31, s31, s10
    s_add_u32 s31, s31, s29           ; rt16
    """)
    w80_voffs(A, VO)
    A("s_waitcnt lgkmcnt(0)")
    srd(A, 12, 4, 2048*640*2)
    srd(A, 16, 6, 640*640*2)
    srd(A, 20, 8, WS_USED)
    A(f"""
    s_mul_i32 s32, s24, 5120          ; lds
    s_mul_i32 s33, s24, {32*1280}
    s_mul_i32 s10, s28, 160
    s_add_u32 s33, s33, s10
    """)
    for n in range(3):
        w80_group(A, VO, "s[16:19]", "s32", "s33")
        A(f"s_add_u32 s32, s32, {8*5120}")
        A(f"s_add_u32 s33, s33, {8*32*1280}")
    A(f"""
    v_lshlrev_b32 v3, 4, v2
    s_mul_i32 s10, s31, 20480
    s_mul_i32 s11, s30, 10240
    s_add_u32 s10, s10, s11
    s_add_u32 s10, s10, {OF}
    """)
    for ks in range(10):
        A(f"buffer_load_dwordx4 {vr(AF+4*ks,4)}, v3, s[20:23], s10 offen offset:{(ks%4)*1024}")
        if ks % 4 == 3: A("s_add_u32 s10, s10, 4096")
    A(f"""
    v_and_b32 v4, 15, v2
    v_mul_u32_u24 v4, 1280, v4
    v_lshrrev_b32 v5, 4, v2
    v_lshl_add_u32 v4, v5, 3, v4
    s_mul_i32 s10, s31, {16*1280}
    s_mul_i32 s11, s28, 160
    s_add_u32 s10, s10, s11
    """)
    for ct in range(5):
        A(f"buffer_load_dwordx2 {vr(XR+2*ct,2)}, v4, s[12:15], s10 offen offset:{32*ct}")
    w80_raddr(A, RA)
    A("s_mul_i32 s10, s30, 51200")
    A(f"v_add_u32 v{RA}, s10, v{RA}")
    for r in range(20):
        A(f"v_mov_b32 v{ACC+r}, 0")
    A("s_waitcnt vmcnt(0)")
    A("s_barrier")
    w80_steps(A, 10, RA, WF, AF, ACC)
    A(f"""
    s_mul_i32 s10, s29, 5120
    s_add_u32 s10, s10, {RED}
    v_add_u32 v3, s10, v3
    s_cmp_eq_u32 s30, 0
    s_cbranch_scc1 K3_r0
    s_nop 4
    """)
    for ct in range(5):
        A(f"ds_write_b128 v3, {vr(ACC+4*ct,4)} offset:{1024*ct}")
    A("""
    s_waitcnt lgkmcnt(0)
    s_barrier
    s_endpgm
    K3_r0:
    s_barrier
    """)
    for ct in range(5):
        A(f"ds_read_b128 {vr(WF+4*ct,4)}, v3 offset:{1024*ct}")
    A(f"""
    s_lshr_b32 s10, s31, 1            ; rt32
    s_mul_i32 s10, s10, 40
    s_mul_i32 s11, s28, 5
    s_add_u32 s10, s10, s11
    s_lshl_b32 s10, s10, 10
    s_add_u32 s10, s10, {HF}
    s_and_b32 s11, s31, 1
    s_lshl_b32 s11, s11, 8
    s_add_u32 s10, s10, s11
    s_add_u32 s11, s10, 4096
    v_and_b32 v4, 15, v2
    v_lshlrev_b32 v4, 4, v4
    v_lshrrev_b32 v5, 5, v2
    v_lshl_add_u32 v4, v5, 9, v4
    v_bfe_u32 v5, v2, 4, 1
    v_lshl_add_u32 v4, v5, 3, v4
    s_waitcnt lgkmcnt(0)
    """)
    for ct in range(5):
        a = ACC + 4*ct
        for e in range(4):
            A(f"v_add_f32 v{a+e}, v{a+e}, v{WF+4*ct+e}")
        A(f"""
        v_lshlrev_b32 v5, 16, v{XR+2*ct}
        v_and_b32 v6, 0xffff0000, v{XR+2*ct}
        v_add_f32 v{a}, v{a}, v5
        v_add_f32 v{a+1}, v{a+1}, v6
        v_lshlrev_b32 v5, 16, v{XR+2*ct+1}
        v_and_b32 v6, 0xffff0000, v{XR+2*ct+1}
        v_add_f32 v{a+2}, v{a+2}, v5
        v_add_f32 v{a+3}, v{a+3}, v6
        v_cvt_pk_bf16_f32 v{a}, v{a}, v{a+1}
        v_cvt_pk_bf16_f32 v{a+1}, v{a+2}, v{a+3}
        """)
        if ct < 4: A(f"buffer_store_dwordx2 {vr(a,2)}, v4, s[20:23], s10 offen offset:{1024*ct}")
        else:      A(f"buffer_store_dwordx2 {vr(a,2)}, v4, s[20:23], s11 offen")
    A("K3_end:")
    A("s_endpgm")
    return dict(name=name, grid=256, block=512, lds=163840, nvgpr=128)

def gen_ffn1(A, name="ffn1_kernel"):
    kernel_begin(A, name)
    common_head(A, "K4_end")
    VO, RA = 8, 11
    SX, SQ, CS = 12, 14, 16
    WF, ACC, AF = 20, 44, 92
    UB = 61568
    A(f"""
    s_load_dwordx4 s[4:7], s[0:1], 32
    s_load_dwordx2 s[8:9], s[0:1], 72
    s_lshl_b32 s27, s25, 3
    s_add_u32 s27, s27, s24           ; rt32
    s_mov_b32 s37, 0x3f803f80
    """)
    for i in range(3):
        A(f"""
        v_add_u32 v5, {64*i}, v2
        v_mul_u32_u24 v6, 171, v5
        v_lshrrev_b32 v6, 10, v6          ; e/6
        v_mul_u32_u24 v7, 6, v6
        v_sub_u32 v5, v5, v7
        v_mul_u32_u24 v6, 3072, v6
        v_lshl_add_u32 v{VO+i}, v5, 4, v6
        """)
        if i: A(f"v_subrev_u32 v{VO+i}, {1024*i}, v{VO+i}")
    A(f"""
    s_waitcnt lgkmcnt(0)
    s_and_b32 s10, s24, 1
    s_cselect_b32 s16, s6, s4
    s_cselect_b32 s17, s7, s5
    s_cselect_b32 s32, {UB}, 0
    s_mov_b32 s18, {640*1536*2}
    s_mov_b32 s19, 0x20000
    """)
    srd(A, 20, 8, WS_USED)
    A(f"""
    s_lshr_b32 s10, s24, 1
    s_mul_i32 s11, s10, 3072
    s_add_u32 s32, s32, s11           ; lds
    s_mul_i32 s33, s10, {32*3072}
    s_mul_i32 s11, s26, 96
    s_add_u32 s33, s33, s11
    """)
    for n in range(5):
        A(f"""
        s_mov_b32 m0, s32
        s_add_u32 s32, s32, {4*3072}
        buffer_load_dwordx4 v{VO}, s[16:19], s33 offen lds
        buffer_load_dwordx4 v{VO+1}, s[16:19], s33 offen offset:1024 lds
        buffer_load_dwordx4 v{VO+2}, s[16:19], s33 offen offset:2048 lds
        s_add_u32 s33, s33, {4*32*3072}
        """)
    A(f"""
    v_lshlrev_b32 v3, 4, v2
    s_mul_i32 s10, s27, 40960
    s_add_u32 s10, s10, {HF}
    """)
    for ks in range(40):
        A(f"buffer_load_dwordx4 {vr(AF+4*ks,4)}, v3, s[20:23], s10 offen offset:{(ks%4)*1024}")
        if ks % 4 == 3: A("s_add_u32 s10, s10, 4096")
    A(f"""
    v_lshrrev_b32 v4, 5, v2           ; h
    v_bfe_u32 v5, v2, 2, 2
    v_lshl_add_u32 v5, v4, 3, v5
    v_mul_u32_u24 v5, 96, v5
    v_and_b32 v6, 3, v2
    v_lshl_add_u32 v5, v6, 3, v5
    v_bfe_u32 v6, v2, 4, 1
    v_mul_u32_u24 v6, {UB}, v6
    v_add_u32 v{RA}, v5, v6
    """)
    for r in list(range(SX, CS+3)) + list(range(ACC, ACC+48)):
        A(f"v_mov_b32 v{r}, 0")
    A("s_waitcnt vmcnt(40)")
    A("s_barrier")
    def rd(ks):
        b = WF + 12*(ks & 1)
        for t in range(3):
            A(f"ds_read_b64_tr_b16 {vr(b+4*t,2)}, v{RA} offset:{ks*1536+t*32}")
            A(f"ds_read_b64_tr_b16 {vr(b+4*t+2,2)}, v{RA} offset:{ks*1536+t*32+384}")
    rd(0)
    for ks in range(40):
        if ks + 1 < 40:
            rd(ks+1)
            A(f"s_waitcnt vmcnt({39-ks}) lgkmcnt(6)")
        else:
            A("s_waitcnt vmcnt(0) lgkmcnt(0)")
        b = WF + 12*(ks & 1)
        a = AF + 4*ks
        for t in range(3):
            A(f"v_mfma_f32_32x32x16_bf16 {vr(ACC+16*t,16)}, {vr(b+4*t,4)}, {vr(a,4)}, {vr(ACC+16*t,16)}")
            for d in range(4):
                A(f"v_dot2c_f32_bf16 v{CS+t}, s37, v{b+4*t+d}")
            if t < 2:
                for d in (2*t, 2*t+1):
                    A(f"v_dot2c_f32_bf16 v{SX+(d&1)}, s37, v{a+d}")
                    A(f"v_dot2c_f32_bf16 v{SQ+(d&1)}, v{a+d}, v{a+d}")
    T = WF
    c1 = -2.0*math.sqrt(2/math.pi)*math.log2(math.e)
    c3 = c1*0.044715
    A(f"""
    s_nop 3
    v_add_f32 v{SX}, v{SX}, v{SX+1}
    v_add_f32 v{SQ}, v{SQ}, v{SQ+1}
    v_mov_b32 v{SX+1}, v{SX}
    v_mov_b32 v{SQ+1}, v{SQ}
    v_mov_b32 v{T}, v{CS}
    v_mov_b32 v{T+1}, v{CS+1}
    v_mov_b32 v{T+2}, v{CS+2}
    s_nop 1
    v_permlane32_swap_b32 v{SX}, v{SX+1}
    v_permlane32_swap_b32 v{SQ}, v{SQ+1}
    v_permlane32_swap_b32 v{CS}, v{T}
    v_permlane32_swap_b32 v{CS+1}, v{T+1}
    v_permlane32_swap_b32 v{CS+2}, v{T+2}
    s_nop 1
    v_add_f32 v{SX}, v{SX}, v{SX+1}
    v_add_f32 v{SQ}, v{SQ}, v{SQ+1}
    v_add_f32 v{CS}, v{CS}, v{T}
    v_add_f32 v{CS+1}, v{CS+1}, v{T+1}
    v_add_f32 v{CS+2}, v{CS+2}, v{T+2}
    v_mul_f32 v{SX}, {f32(-1/640)}, v{SX}   ; -mean
    v_mul_f32 v{SQ}, {f32(1/640)}, v{SQ}
    v_fma_f32 v{SQ}, -v{SX}, v{SX}, v{SQ}
    v_max_f32 v{SQ}, 0, v{SQ}
    v_add_f32 v{SQ}, {f32(EPS)}, v{SQ}
    v_rsq_f32 v{SQ+1}, v{SQ}                 ; a
    s_mov_b32 s10, 0x07060302
    s_mov_b32 s11, 0x03020302
    v_and_b32 v5, 0xffff0000, v{SX}
    v_sub_f32 v5, v{SX}, v5
    v_cmp_gt_u32 vcc, 32, v2
    v_perm_b32 v{T+4}, v{SX}, v{SX}, s11
    v_perm_b32 v{T+5}, v5, v5, s11
    v_cndmask_b32 v{T+4}, 0, v{T+4}, vcc
    v_cndmask_b32 v{T+5}, 0, v{T+5}, vcc
    """)
    for t in range(3):
        A(f"""
        v_and_b32 v5, 0xffff0000, v{CS+t}
        v_sub_f32 v5, v{CS+t}, v5
        v_perm_b32 v{T+6+2*t}, v5, v{CS+t}, s10
        v_perm_b32 v{T+7+2*t}, v5, v{CS+t}, s10
        """)
    A("s_nop 1")
    for t in range(3):
        A(f"v_mfma_f32_32x32x8_bf16 {vr(ACC+16*t,16)}, {vr(T+6+2*t,2)}, {vr(T+4,2)}, {vr(ACC+16*t,16)}")
    A1, A3, IA2 = SX, SX+1, SQ
    A(f"""
    v_mul_f32 v{A1}, {f32(c1)}, v{SQ+1}
    v_mul_f32 v{A3}, v{SQ+1}, v{SQ+1}
    v_mul_f32 v{A3}, v{A3}, v{SQ+1}
    v_mul_f32 v{A3}, {f32(c3)}, v{A3}
    v_and_b32 v5, 15, v2
    v_lshlrev_b32 v5, 4, v5
    v_lshl_add_u32 v5, v4, 8, v5
    v_bfe_u32 v6, v2, 4, 1
    v_mul_u32_u24 v6, 49152, v6
    v_add_u32 v5, v5, v6
    s_mul_i32 s10, s27, 98304
    s_mul_i32 s11, s26, 1536
    s_add_u32 s10, s10, s11
    s_add_u32 s10, s10, {GF}
    s_nop 4
    """)
    E = AF
    for t in range(3):
        g = ACC + 16*t; u = g + 8
        for e in range(8): A(f"v_mul_f32 v{E+e}, v{g+e}, v{g+e}")
        for e in range(8): A(f"v_fma_f32 v{E+e}, v{E+e}, v{A3}, v{A1}")
        for e in range(8): A(f"v_mul_f32 v{E+e}, v{E+e}, v{g+e}")
        for e in range(8): A(f"v_exp_f32 v{E+e}, v{E+e}")
        for e in range(8): A(f"v_mul_f32 v{g+e}, v{g+e}, v{u+e}")
        for e in range(8): A(f"v_fma_f32 v{E+e}, v{E+e}, v{IA2}, v{IA2}")
        for e in range(8): A(f"v_rcp_f32 v{E+e}, v{E+e}")
        A("s_nop 0")
        for e in range(8): A(f"v_mul_f32 v{g+e}, v{g+e}, v{E+e}")
        for e in range(4): A(f"v_cvt_pk_bf16_f32 v{u+e}, v{g+2*e}, v{g+2*e+1}")
        A(f"buffer_store_dwordx4 {vr(u,4)}, v5, s[20:23], s10 offen offset:{512*t}")
    A("K4_end:")
    A("s_endpgm")
    return dict(name=name, grid=256, block=512, lds=163840, nvgpr=256)

def gen_ffn2(A, name="ffn2_kernel"):
    kernel_begin(A, name)
    common_head(A, "K5_end")
    VO, RA, HR, ACC, WF, AF = 8, 13, 16, 24, 44, 84
    P = 336
    A(f"""
    s_load_dwordx4 s[4:7], s[0:1], 48
    s_load_dwordx2 s[8:9], s[0:1], 72
    s_lshr_b32 s27, s26, 3            ; rt4
    s_and_b32 s28, s26, 7             ; cbk
    s_and_b32 s29, s24, 3             ; rt
    s_lshr_b32 s30, s24, 2            ; kh
    s_lshl_b32 s31, s25, 4
    s_lshl_b32 s10, s27, 2
    s_add_u32 s34, s31, s10
    s_add_u32 s31, s34, s29           ; rt16
    """)
    w80_voffs(A, VO)
    A("s_waitcnt lgkmcnt(0)")
    srd(A, 12, 6, 2048*640*2)
    srd(A, 16, 4, 1536*640*2)
    srd(A, 20, 8, WS_USED)
    def wload(p):
        for n in range(3):
            A(f"""
            s_add_u32 s10, s24, {8*n}
            s_mul_i32 s32, s10, 5120
            s_add_u32 s11, s10, 12
            s_cmp_ge_u32 s10, 12
            s_cselect_b32 s10, s11, s10
            s_add_u32 s10, s10, {12*p}
            s_mul_i32 s33, s10, {32*1280}
            s_mul_i32 s10, s28, 160
            s_add_u32 s33, s33, s10
            """)
            w80_group(A, VO, "s[16:19]", "s32", "s33")
    wload(0)
    A(f"""
    v_lshlrev_b32 v3, 4, v2
    s_mul_i32 s10, s31, 49152
    s_mul_i32 s11, s30, 24576
    s_add_u32 s10, s10, s11
    s_add_u32 s10, s10, {GF}
    """)
    for ks in range(24):
        A(f"buffer_load_dwordx4 {vr(AF+4*ks,4)}, v3, s[20:23], s10 offen offset:{(ks%4)*1024}")
        if ks % 4 == 3: A("s_add_u32 s10, s10, 4096")
    for rnd in range(2):
        A(f"""
        v_add_u32 v5, {512*rnd}, v0
        v_mul_u32_u24 v6, 6554, v5
        v_lshrrev_b32 v6, 16, v6          ; token (0..63)
        v_mul_u32_u24 v7, 10, v6
        v_sub_u32 v5, v5, v7              ; c
        v_mul_u32_u24 v7, {P}, v6
        v_lshl_add_u32 v{180+rnd}, v5, 5, v7
        v_mul_u32_u24 v7, 1280, v6
        v_lshl_add_u32 v{182+rnd}, v5, 4, v7
        v_lshrrev_b32 v7, 5, v6
        v_mul_u32_u24 v7, 40960, v7
        v_and_b32 v6, 31, v6
        v_lshl_add_u32 v7, v6, 4, v7
        v_lshl_add_u32 v{184+rnd}, v5, 9, v7
        """)
    A(f"""
    s_lshr_b32 s10, s34, 1
    s_mul_i32 s10, s10, 40960
    s_mul_i32 s11, s28, 5120
    s_add_u32 s10, s10, s11
    s_add_u32 s10, s10, {HF}
    buffer_load_dwordx4 {vr(HR,4)}, v184, s[20:23], s10 offen
    buffer_load_dwordx4 {vr(HR+4,4)}, v185, s[20:23], s10 offen
    """)
    w80_raddr(A, RA)
    A("s_mul_i32 s10, s30, 61440")
    A(f"v_add_u32 v{RA}, s10, v{RA}")
    for r in range(20):
        A(f"v_mov_b32 v{ACC+r}, 0")
    A("s_waitcnt vmcnt(0)")
    A("s_barrier")
    w80_steps(A, 12, RA, WF, AF, ACC, 0)
    A("s_barrier")
    wload(1)
    A("s_waitcnt vmcnt(0)")
    A("s_barrier")
    w80_steps(A, 12, RA, WF, AF, ACC, 12)
    RED = 122880 - 0
    A(f"""
    s_barrier
    v_and_b32 v4, 15, v2
    v_mul_u32_u24 v4, {P}, v4
    v_lshrrev_b32 v5, 4, v2
    v_lshl_add_u32 v4, v5, 4, v4
    s_mul_i32 s10, s24, {16*P}
    v_add_u32 v4, s10, v4
    s_nop 2
    """)
    for ct in range(5):
        A(f"ds_write_b128 v4, {vr(ACC+4*ct,4)} offset:{64*ct}")
    A(f"""
    s_mul_i32 s10, s34, {16*1280}
    s_mul_i32 s11, s28, 160
    s_add_u32 s10, s10, s11
    s_waitcnt lgkmcnt(0)
    s_barrier
    """)
    for rnd in range(2):
        if rnd == 1:
            A("s_cmp_ge_u32 s24, 2")
            A("s_cbranch_scc1 K5_end")
        b = WF + 16*rnd
        A(f"""
        ds_read_b128 {vr(b,4)}, v{180+rnd}
        ds_read_b128 {vr(b+4,4)}, v{180+rnd} offset:16
        ds_read_b128 {vr(b+8,4)}, v{180+rnd} offset:{64*P}
        ds_read_b128 {vr(b+12,4)}, v{180+rnd} offset:{64*P+16}
        s_waitcnt lgkmcnt(0)
        """)
        for e in range(8): A(f"v_add_f32 v{b+e}, v{b+e}, v{b+8+e}")
        for e in range(4):
            A(f"""
            v_lshlrev_b32 v5, 16, v{HR+4*rnd+e}
            v_and_b32 v6, 0xffff0000, v{HR+4*rnd+e}
            v_add_f32 v{b+2*e}, v{b+2*e}, v5
            v_add_f32 v{b+2*e+1}, v{b+2*e+1}, v6
            """)
        for e in range(4): A(f"v_cvt_pk_bf16_f32 v{b+8+e}, v{b+2*e}, v{b+2*e+1}")
        A(f"buffer_store_dwordx4 {vr(b+8,4)}, v{182+rnd}, s[12:15], s10 offen")
    A("K5_end:")
    A("s_endpgm")
    return dict(name=name, grid=256, block=512, lds=163840, nvgpr=192)
```

```python
import sys
from asmlib import *
import k1, k2, k345
REF = open("sequential_preLN__softmax_full_mha__geglu_ffn__prompt.s.ref").read()
head = "".join(l + "\n" for l in REF.split("\n") if l.startswith(";") and "launch" not in l and "grid=ceil" not in l)
A = Asm()
A('.amdgcn_target "amdgcn-amd-amdhsa--gfx950"')
A(".text")
ks = [k1.gen_k1(A), k2.gen_attn(A), k345.gen_wo(A), k345.gen_ffn1(A), k345.gen_ffn2(A)]
out = head
for k in ks:
    out += f"; @launch kernel={k['name']} grid=({k['grid']},1,1) block=({k['block']},1,1) lds={k['lds']}\n"
out += A.text()
out += '.section .rodata,"a"\n'
for k in ks:
    out += kernel_desc(k["name"], k["nvgpr"])
path = sys.argv[1] if len(sys.argv) > 1 else "sequential_preLN__softmax_full_mha__geglu_ffn__prompt.s"
open(path, "w").write(out)
print("wrote", path, len(out))
```

```python
class Asm:
    def __init__(self):
        self.lines = []
        self.lab = 0
    def __call__(self, s):
        for ln in s.strip("\n").split("\n"):
            ln = ln.rstrip()
            if not ln.strip():
                continue
            t = ln.strip()
            if t.endswith(":") or t.startswith("."):
                self.lines.append(t)
            else:
                self.lines.append("    " + t)
    def label(self, base="L"):
        self.lab += 1
        return f"{base}_{self.lab}"
    def text(self):
        return "\n".join(self.lines) + "\n"

def vr(a, n=1):
    return f"v{a}" if n == 1 else f"v[{a}:{a+n-1}]"
def sr(a, n=1):
    return f"s{a}" if n == 1 else f"s[{a}:{a+n-1}]"

def srd(A, d, ptr, nbytes, add=0):
    if add:
        A(f"s_add_u32 s{d}, s{ptr}, {add:#x}")
        A(f"s_addc_u32 s{d+1}, s{ptr+1}, 0")
    else:
        A(f"s_mov_b32 s{d}, s{ptr}")
        A(f"s_mov_b32 s{d+1}, s{ptr+1}")
    A(f"s_mov_b32 s{d+2}, {nbytes:#x}")
    A(f"s_mov_b32 s{d+3}, 0x20000")

def kernel_begin(A, name):
    A(f".globl {name}")
    A(".p2align 8")
    A(f".type {name},@function")
    A(f"{name}:")

def kernel_desc(name, nvgpr, nsgpr=102, accum=None):
    if accum is None:
        accum = (nvgpr + 3) // 4 * 4
    return f""".p2align 6
.amdhsa_kernel {name}
  .amdhsa_next_free_vgpr {nvgpr}
  .amdhsa_next_free_sgpr {nsgpr}
  .amdhsa_accum_offset {accum}
  .amdhsa_group_segment_fixed_size 0
  .amdhsa_kernarg_size 80
  .amdhsa_user_sgpr_count 2
  .amdhsa_user_sgpr_kernarg_segment_ptr 1
  .amdhsa_system_sgpr_workgroup_id_x 1
  .amdhsa_float_denorm_mode_32 3
  .amdhsa_float_denorm_mode_16_64 3
.end_amdhsa_kernel
"""
import struct
def f32(x):
    return "0x%08x" % struct.unpack("<I", struct.pack("<f", x))[0]

import os
RT = 'rt' in os.environ.get('OPT','').split(',')
STAMPS = False
STAMP_BASE = 0x2000000
def stamp(A, i):
    if STAMPS:
        A(f"{'s_memrealtime' if RT else 's_memtime'} s[{70+2*i}:{71+2*i}]")
def stamp_rt(A, i):
    if STAMPS:
        A(f"s_memrealtime s[{94+2*i}:{95+2*i}]")
def stamp_flush(A, kidx, n, wave="s24", wsptr=8):
    if not STAMPS: return
    stamp_rt(A, 1)
    A(f"""
    s_waitcnt lgkmcnt(0)
    s_mov_b64 exec, -1
    s_mov_b32 s60, s{wsptr}
    s_mov_b32 s61, s{wsptr+1}
    s_mov_b32 s62, 0x4000000
    s_mov_b32 s63, 0x20000
    s_add_u32 s64, s2, {kidx*256}
    s_lshl_b32 s64, s64, 3
    s_add_u32 s64, s64, {wave}
    s_lshl_b32 s64, s64, 6
    s_add_u32 s64, s64, {STAMP_BASE}
    v_mov_b32 v1, 0
    """)
    for i in range(n):
        A(f"v_mov_b32 v0, s{70+2*i}")
        A(f"buffer_store_dword v0, v1, s[60:63], s64 offen offset:{4*i}")
    for i in range(2):
        A(f"v_mov_b32 v0, s{94+2*i}")
        A(f"buffer_store_dword v0, v1, s[60:63], s64 offen offset:{56+4*i}")
```

```python
from asmlib import *
import asmlib
from layout import *
import math, os
OPT = set(os.environ.get('OPT','').split(','))

class VM:
    def __init__(self): self.q = []
    def op(self, tag): self.q.append(tag)
    def need(self, tag):
        idx = max(i for i, t in enumerate(self.q) if t == tag)
        n = len(self.q) - 1 - idx
        assert n <= 63
        return n
    def clear(self): self.q = []

VO80, TCH, XT, JUNK, L4, L16 = 112, 121, 122, 123, 124, 125
PKD, PKE = 128, 188
XL = 102400
RED = 122880
CSP = 143360
CST = CSP + 6144
S_W, S_G, S_IDX = 24, 25, 26
S_GB = 52
S_FL = 53
S_MODE = 54
S_XCC = 55
S_RT4, S_CBK, S_RT, S_KH, S_RT16 = 56, 57, 58, 59, 66
S_HD, S_QB = 38, 39

def gsync(A, name, shadow):
    A(f"""
    s_waitcnt vmcnt(0) lgkmcnt(0)
    s_barrier
    s_cmp_lg_u32 s{S_W}, 0
    s_cbranch_scc1 {name}_sig
    s_lshl_b32 s10, s{S_QB}, 9
    s_lshl_b32 s11, s{S_HD}, 2
    s_add_u32 s10, s10, s11
    s_add_u32 s10, s10, {FL+128}
    v_mov_b32 v5, 1
    v_mov_b32 v6, 0
    s_mov_b64 exec, 1
    buffer_store_dword v5, v6, s[20:23], s10 offen sc1
    s_mov_b64 exec, -1
    """)
    shadow()
    A(f"""
    s_mov_b32 s11, 0x40000
    {name}_poll:
    buffer_load_dword v5, v{L4}, s[20:23], s{S_FL} offen offset:128 sc1
    s_sub_u32 s11, s11, 1
    s_cmp_eq_u32 s11, 0
    s_cbranch_scc1 {name}_done
    s_waitcnt vmcnt(0)
    v_cmp_ne_u32 vcc, 1, v5
    s_cbranch_vccnz {name}_poll
    s_branch {name}_done
    {name}_sig:
    """)
    shadow()
    A(f"{name}_done:")
    A("s_waitcnt lgkmcnt(0)")
    A("s_barrier")

def sync(A, line, name, shadow=None, shadow0=None):
    A(f"""
    s_waitcnt vmcnt(0) lgkmcnt(0)
    s_barrier
    s_cmp_lg_u32 s{S_W}, 0
    s_cbranch_scc1 {name}_sig
    s_lshl_b32 s10, s{S_IDX}, 2
    s_add_u32 s10, s10, s{S_FL}
    v_mov_b32 v5, 1
    v_mov_b32 v6, 0
    s_mov_b64 exec, 1
    s_cmp_lg_u32 s{S_MODE}, 0
    s_cbranch_scc1 {name}_slow
    buffer_store_dword v5, v6, s[20:23], s10 offen offset:{128*line}
    s_branch {name}_poll0
    {name}_slow:
    buffer_wbl2 sc1
    s_waitcnt vmcnt(0)
    buffer_store_dword v5, v6, s[20:23], s10 offen offset:{128*line} sc0 sc1
    {name}_poll0:
    s_mov_b64 exec, -1
    """)
    if shadow0: shadow0()
    A(f"""
    s_mov_b32 s11, 0x40000
    {name}_poll:
    buffer_load_dword v5, v{L4}, s[20:23], s{S_FL} offen offset:{128*line} sc1
    s_sub_u32 s11, s11, 1
    s_cmp_eq_u32 s11, 0
    s_cbranch_scc1 {name}_got
    s_waitcnt vmcnt(0)
    v_cmp_ne_u32 vcc, 1, v5
    s_cbranch_vccnz {name}_poll
    {name}_got:
    s_cmp_eq_u32 s{S_MODE}, 0
    s_cbranch_scc1 {name}_done
    buffer_inv sc1
    s_waitcnt vmcnt(0)
    s_branch {name}_done
    {name}_sig:
    """)
    if shadow: shadow()
    A(f"{name}_done:")
    A("s_waitcnt lgkmcnt(0)")
    A("s_barrier")

def gen_fused(A, name="main_kernel"):
    kernel_begin(A, name)
    stamp = asmlib.stamp
    stamp_rt(A, 0); stamp(A, 0)
    vm = VM()
    Q0, Q1, K0, K1, V0, V1, P0, P1 = 8, 12, 16, 20, 24, 28, 32, 36
    AK0, AK1, AV = 40, 41, 42
    NEGM, SA, SB, O = 48, 64, 80, 96
    A(f"""
    s_cmp_ge_u32 s2, 256
    s_cbranch_scc1 F_end
    s_load_dwordx2 s[8:9], s[0:1], 72
    s_load_dwordx2 s[4:5], s[0:1], 0
    s_load_dwordx2 s[6:7], s[0:1], 56
    v_lshrrev_b32 v1, 6, v0
    v_and_b32 v2, 63, v0              ; lane
    s_and_b32 s{S_G}, s2, 7
    v_readfirstlane_b32 s{S_W}, v1
    s_lshr_b32 s{S_IDX}, s2, 3
    s_getreg_b32 s{S_XCC}, hwreg(HW_REG_XCC_ID)
    v_and_b32 v3, 31, v2              ; t
    v_lshrrev_b32 v4, 5, v2           ; h
    v_lshlrev_b32 v{L16}, 4, v2
    v_lshlrev_b32 v{AK0}, 4, v2
    v_lshlrev_b32 v{AK1}, 3, v3
    v_add_u32 v{AK1}, 1024, v{AK1}
    s_mul_i32 s{S_GB}, s{S_G}, {GRP_SZ}
    s_add_u32 s{S_GB}, s{S_GB}, {GRP}
    s_and_b32 s10, s{S_IDX}, 3
    s_lshl_b32 s{S_HD}, s{S_G}, 2
    s_add_u32 s{S_HD}, s{S_HD}, s10
    s_lshr_b32 s{S_QB}, s{S_IDX}, 2
    s_lshl_b32 s10, s{S_HD}, 3
    s_add_u32 s10, s10, s{S_QB}
    s_lshl_b32 s10, s10, 3
    s_add_u32 s10, s10, s{S_W}
    s_mul_i32 s28, s10, 1280
    s_add_u32 s28, s28, {QF}          ; Q soffset
    s_mul_i32 s29, s{S_HD}, 163840
    s_lshl_b32 s30, s{S_W}, 10
    s_mul_i32 s34, s{S_QB}, 20480
    s_add_u32 s34, s34, s30
    s_add_u32 s34, s34, s29
    s_add_u32 s37, s29, 163840
    s_mov_b32 s22, {WS_USED}
    s_mov_b32 s23, 0x20000
    s_lshl_b32 s{S_FL}, s{S_G}, 9
    s_add_u32 s{S_FL}, s{S_FL}, {FL}
    s_and_b32 s{S_XCC}, s{S_XCC}, 15
    s_add_u32 s{S_XCC}, s{S_XCC}, 1
    s_waitcnt lgkmcnt(0)
    s_mov_b32 s20, s8
    s_mov_b32 s21, s9
    buffer_load_dwordx4 {vr(Q0,4)}, v{L16}, s[20:23], s28 offen
    buffer_load_dwordx2 {vr(Q1,2)}, v{AK1}, s[20:23], s28 offen
    """)
    vm.op("q"); vm.op("q")
    kvr = [0]
    def kv_round():
        A(f"""
        s_mov_b32 m0, s30
        s_add_u32 s30, s30, 8192
        buffer_load_dwordx4 v{L16}, s[20:23], s34 offen lds
        s_add_u32 s34, s34, 8192
        s_sub_u32 s10, s34, 163840
        s_cmp_ge_u32 s34, s37
        s_cselect_b32 s34, s10, s34
        """)
        vm.op(f"kv{kvr[0]}"); kvr[0] += 1
    for _ in range(2): kv_round()
    stamp(A, 1)
    srd(A, 12, 4, 2048*640*2)
    srd(A, 40, 6, 2048*640*2)
    A(f"""
    v_mul_u32_u24 v5, 20, v4
    v_add_u32 v5, v5, v3
    v_lshlrev_b32 v5, 4, v5
    v_add_u32 v{AV}, 1280, v5
    s_mov_b32 s32, 0x000fffff
    s_mov_b32 s33, 0x000fffff
    v_lshlrev_b32 v{L4}, 2, v3
    v_lshlrev_b32 v{TCH}, 7, v2
    v_mov_b32 v126, 0
    v_mov_b32 v127, 0
    s_lshr_b32 s{S_RT4}, s{S_IDX}, 3
    s_and_b32 s{S_CBK}, s{S_IDX}, 7
    s_and_b32 s{S_RT}, s{S_W}, 3
    s_lshr_b32 s{S_KH}, s{S_W}, 2
    s_lshl_b32 s10, s{S_RT4}, 2
    s_add_u32 s{S_RT16}, s10, s{S_RT}
    """)
    for i in range(2):
        A(f"""
        v_add_u32 v5, {512*i}, v0
        v_mul_u32_u24 v6, 6554, v5
        v_lshrrev_b32 v6, 16, v6
        v_mul_u32_u24 v7, 10, v6
        v_sub_u32 v5, v5, v7
        v_mul_u32_u24 v6, 1280, v6
        v_lshl_add_u32 v{VO80+i}, v5, 4, v6
        """)
    A(f"""
    s_mul_i32 s35, s{S_IDX}, 122880
    s_mul_i32 s10, s{S_W}, 15360
    s_add_u32 s35, s35, s10
    s_add_u32 s35, s35, {WGP}
    s_lshl_b32 s67, s{S_W}, 10         ; W_C lds
    s_mul_i32 s68, s{S_CBK}, 102400
    s_add_u32 s68, s68, s67
    s_add_u32 s68, s68, {WOP}
    s_lshl_b32 s11, s{S_G}, 2
    s_add_u32 s11, s11, s{S_RT4}
    s_mul_i32 s69, s11, {64*1280}
    s_mul_i32 s10, s{S_CBK}, 160
    s_add_u32 s69, s69, s10
    s_mul_i32 s65, s{S_CBK}, {48*5120}
    s_mul_i32 s10, s{S_W}, {6*5120}
    s_add_u32 s65, s65, s10
    s_add_u32 s65, s65, {WDP}
    s_mul_i32 s36, s{S_IDX}, {(GRP_SZ-G_T)//32}
    s_mul_i32 s10, s{S_W}, {25*128}
    s_add_u32 s36, s36, s10
    s_add_u32 s36, s36, {G_T}
    s_add_u32 s36, s36, s{S_GB}
    """)
    if True:
        A("v_and_b32 v5, 27, v2")
        A("v_cmp_eq_u32 vcc, 24, v5")
        A("v_mov_b32 v6, 0x3f803f80")
        A("s_nop 1")
        for r in range(8): A(f"v_cndmask_b32 v{V0+r}, 0, v6, vcc")
    else:
        for r in range(8): A(f"v_mov_b32 v{V0+r}, 0x3f803f80")
    for r in range(16): A(f"v_mov_b32 v{O+r}, 0")
    for r in range(4): A(f"v_mov_b32 v{P1+r}, 0")
    A(f"""
    v_cmp_gt_u32 vcc, 32, v2
    s_waitcnt vmcnt({vm.need('kv1')})
    v_cndmask_b32 v{Q1}, 0, v{Q1}, vcc
    v_cndmask_b32 v{Q1+1}, 0, v{Q1+1}, vcc
    s_barrier
    ds_read_b128 {vr(K0,4)}, v{AK0}
    ds_read_b64 {vr(K1,2)}, v{AK1}
    """)
    for _ in range(3): kv_round()
    A(f"""
    s_cmp_lg_u32 s{S_W}, 0
    s_cbranch_scc1 F_noxcc
    s_lshl_b32 s10, s{S_IDX}, 2
    s_add_u32 s10, s10, s{S_FL}
    v_mov_b32 v5, s{S_XCC}
    v_mov_b32 v6, 0
    s_mov_b64 exec, 1
    buffer_store_dword v5, v6, s[20:23], s10 offen sc0 sc1
    s_mov_b64 exec, -1
    F_noxcc:
    """)
    A(f"""
    s_waitcnt lgkmcnt(0)
    v_mfma_f32_32x32x16_bf16 {vr(SA,16)}, {vr(K0,4)}, {vr(Q0,4)}, 0
    v_mfma_f32_32x32x8_bf16 {vr(SA,16)}, {vr(K1,2)}, {vr(Q1,2)}, {vr(SA,16)}
    ds_read_b128 {vr(K0,4)}, v{AK0} offset:2560
    ds_read_b64 {vr(K1,2)}, v{AK1} offset:2560
    s_nop 9
    v_max3_f32 v5, v{SA}, v{SA+1}, v{SA+2}
    v_max3_f32 v6, v{SA+3}, v{SA+4}, v{SA+5}
    v_max3_f32 v5, v5, v{SA+6}, v{SA+7}
    v_max3_f32 v6, v6, v{SA+8}, v{SA+9}
    v_max3_f32 v5, v5, v{SA+10}, v{SA+11}
    v_max3_f32 v6, v6, v{SA+12}, v{SA+13}
    v_max3_f32 v5, v5, v{SA+14}, v{SA+15}
    v_max_f32 v5, v5, v6
    v_mov_b32 v6, v5
    s_nop 1
    v_permlane32_swap_b32 v5, v6
    s_nop 1
    v_max_f32 v5, v5, v6
    """)
    for r in range(16): A(f"v_sub_f32 v{NEGM+r}, 0, v5")
    for r in range(16): A(f"v_sub_f32 v{SA+r}, v{SA+r}, v5")
    stamp(A, 2)
    jobs = {}
    def wd_load(j):
        def f():
            A(f"buffer_load_dwordx4 {vr(PKD+4*j,4)}, v{L16}, s[20:23], s35 offen offset:{(j%4)*1024}")
            if j % 4 == 3: A("s_add_u32 s35, s35, 4096")
            vm.op("wd")
        return f
    def wc_piece(j):
        def f():
            lab = None
            if j == 12:
                lab = A.label("F_wc")
                A(f"s_cmp_ge_u32 s{S_W}, 4")
                A(f"s_cbranch_scc1 {lab}")
            A(f"""
            s_mov_b32 m0, s67
            s_add_u32 s67, s67, 8192
            buffer_load_dwordx4 v{L16}, s[20:23], s68 offen lds
            s_add_u32 s68, s68, 8192
            """)
            if lab: A(f"{lab}:")
            else: vm.op("wc")
        return f
    def x_piece(i):
        def f():
            lab = None
            if i == 1:
                lab = A.label("F_xp")
                A(f"s_cmp_ge_u32 s{S_W}, 2")
                A(f"s_cbranch_scc1 {lab}")
            A(f"""
            s_lshl_b32 s10, s{S_W}, 10
            s_add_u32 m0, s10, {XL+8192*i}
            s_nop 0
            buffer_load_dwordx4 v{VO80+i}, s[12:15], s69 offen lds
            """)
            if lab: A(f"{lab}:")
            else: vm.op("x")
        return f
    def touch():
        A(f"""
        s_mov_b64 exec, 0x1ffffff
        buffer_load_dword v{JUNK}, v{TCH}, s[20:23], s36 offen sc1
        s_mov_b64 exec, -1
        """)
        vm.op("x")
    def xcc_load():
        A(f"buffer_load_dword v{XT}, v{L4}, s[20:23], s{S_FL} offen sc1")
        vm.op("xcc")
        A(f"v_and_b32 v5, 0x180, v{TCH}")
        A(f"buffer_load_dword v{JUNK}, v5, s[20:23], s{S_FL} offen sc1")
        vm.op("x")
    def we_load(dst, j, tag=True):
        def f():
            A(f"buffer_load_dwordx4 {vr(dst+4*j,4)}, v{L16}, s[20:23], s65 offen offset:{(j%4)*1024}")
            if j % 4 == 3: A("s_add_u32 s65, s65, 4096")
            if j == 14: A("s_add_u32 s65, s65, 3072")
            if tag: vm.op("we")
        return f
    def we_touch():
        A(f"""
        s_mul_i32 s10, s{S_RT4}, 3840
        s_add_u32 s10, s10, s65
        s_mov_b64 exec, 0x3fffffff
        buffer_load_dword v{JUNK}, v{TCH}, s[20:23], s10 offen
        s_mov_b64 exec, -1
        """)
        vm.op("x")
    def code_touch():
        lab = A.label("F_ct")
        A(f"""
        s_cmp_lg_u32 s{S_W}, 7
        s_cbranch_scc1 {lab}
        s_getpc_b64 s[10:11]
        F_ctpc:
        s_and_b32 s28, s{S_IDX}, 3
        s_lshl_b32 s28, s28, 13
        v_add_u32 v5, s28, v{TCH}
        v_min_u32 v5, F_kend-F_ctpc-4, v5
        global_load_dword v{JUNK}, v5, s[10:11]
        {lab}:
        """)
    jobs2 = {}
    for r in range(5, 20): jobs[2*(r-4)] = kv_round
    for j in range(15): jobs2[3+3*j] = wd_load(j)
    for j in range(15): jobs[13+2*j] = we_load(PKE, j)
    for j in range(13): jobs[44+j] = wc_piece(j)
    jobs2[47] = we_touch
    jobs2[49] = x_piece(0)
    jobs2[51] = x_piece(1)
    jobs2[43] = xcc_load
    jobs2[41] = code_touch
    jobs2[55] = touch
    if 'nojobs' in OPT: jobs = {k:v for k,v in jobs.items() if v is kv_round}; jobs2 = {43: xcc_load}
    bars = {4: "kv4", 12: "kv8", 24: "kv14", 44: "kv19"}
    baseK = 0; baseV = 0
    for n in range(64):
        S, Sn = (SA, SB) if n % 2 == 0 else (SB, SA)
        def ex(a, b):
            for r in range(a, b): A(f"v_exp_f32 v{S+r}, v{S+r}")
        def cv(P, a):
            for e in range(4): A(f"v_cvt_pk_bf16_f32 v{P+e}, v{S+a+2*e}, v{S+a+2*e+1}")
        if n in bars:
            A(f"s_waitcnt vmcnt({vm.need(bars[n])})")
            A("s_barrier")
        A(f"s_setprio {3-(n%4)}")
        if 'attnst' in OPT and n % 8 == 0 and n > 0: asmlib.stamp(A, 3 + n//8)
        if 2560*n + 640 - baseV > 65000:
            A(f"v_add_u32 v{AV}, {2560*n-baseV}, v{AV}"); baseV = 2560*n
        if 2560*(n+2) - baseK > 65000:
            A(f"v_add_u32 v{AK0}, {2560*(n+2)-baseK}, v{AK0}")
            A(f"v_add_u32 v{AK1}, {2560*(n+2)-baseK}, v{AK1}"); baseK = 2560*(n+2)
        ex(0, 2)
        A(f"v_mfma_f32_32x32x16_bf16 {vr(O,16)}, {vr(V1,4)}, {vr(P1,4)}, {vr(O,16)}")
        A("s_mov_b64 exec, s[32:33]")
        A(f"ds_read_b128 {vr(V0,4)}, v{AV} offset:{2560*n-baseV}")
        A(f"ds_read_b128 {vr(V1,4)}, v{AV} offset:{2560*n-baseV+640}")
        A("s_mov_b64 exec, -1")
        if n in jobs2: jobs2[n]()
        ex(2, 7)
        if n < 63:
            A("s_waitcnt lgkmcnt(2)")
            A(f"v_mfma_f32_32x32x16_bf16 {vr(Sn,16)}, {vr(K0,4)}, {vr(Q0,4)}, {vr(NEGM,16)}")
        ex(7, 8)
        cv(P0, 0)
        ex(8, 10)
        if n < 63:
            A(f"v_mfma_f32_32x32x8_bf16 {vr(Sn,16)}, {vr(K1,2)}, {vr(Q1,2)}, {vr(Sn,16)}")
        if n < 62:
            A(f"ds_read_b128 {vr(K0,4)}, v{AK0} offset:{2560*(n+2)-baseK}")
            A(f"ds_read_b64 {vr(K1,2)}, v{AK1} offset:{2560*(n+2)-baseK}")
        if n in jobs: jobs[n]()
        ex(10, 15)
        A(f"s_waitcnt lgkmcnt({2 if n < 62 else 0})")
        A(f"v_mfma_f32_32x32x16_bf16 {vr(O,16)}, {vr(V0,4)}, {vr(P0,4)}, {vr(O,16)}")
        ex(15, 16)
        cv(P1, 8)
    A("s_setprio 0")
    A("s_nop 0")
    A(f"v_mfma_f32_32x32x16_bf16 {vr(O,16)}, {vr(V1,4)}, {vr(P1,4)}, {vr(O,16)}")
    stamp(A, 3)
    if 'attnst' in OPT:
        def stamp(A, i): pass
    else:
        stamp = asmlib.stamp
    A(f"""
    v_lshrrev_b32 v5, 4, v3
    v_mul_u32_u24 v5, {20*1024}, v5
    v_and_b32 v6, 15, v3
    v_lshl_add_u32 v17, v6, 4, v5     ; (t>>4)*20480 + (t&15)*16
    v_lshl_add_u32 v16, v4, 8, v17    ; + h*256
    s_mul_i32 s44, s{S_QB}, {GRP_SZ}
    s_mul_i32 s10, s{S_W}, 40960
    s_add_u32 s44, s44, s10
    s_add_u32 s44, s44, {GRP+G_O}
    s_lshr_b32 s10, s{S_HD}, 1
    s_lshl_b32 s10, s10, 8
    s_and_b32 s11, s{S_HD}, 1
    s_lshl_b32 s11, s11, 3
    s_add_u32 s45, s10, s11
    s_add_u32 s45, s45, s44
    s_add_u32 s45, s45, 16384
    s_lshl_b32 s10, s{S_HD}, 9
    s_add_u32 s44, s44, s10
    """)
    A(f"""
    v_add_f32 v6, abs(v{O}), abs(v{O+1})
    v_add_f32 v7, abs(v{O+2}), abs(v{O+3})
    v_add_f32 v6, v6, abs(v{O+4})
    v_add_f32 v7, v7, abs(v{O+5})
    v_add_f32 v6, v6, abs(v{O+6})
    v_add_f32 v7, v7, abs(v{O+7})
    v_add_f32 v6, v6, abs(v{O+8})
    v_add_f32 v7, v7, abs(v{O+9})
    v_add_f32 v6, v6, abs(v{O+10})
    v_add_f32 v7, v7, abs(v{O+11})
    v_add_f32 v6, v6, v7
    v_cmp_ngt_f32 vcc, {f32(2.0**64)}, v{O+12}
    s_mov_b64 s[10:11], vcc
    v_cmp_ngt_f32 vcc, {f32(2.0**126)}, v6
    s_or_b64 s[10:11], s[10:11], vcc
    s_cbranch_scc1 F_slow
    F_out:
    v_rcp_f32 v6, v{O+12}
    s_nop 0
    """)
    for r in range(12): A(f"v_mul_f32 v{O+r}, v{O+r}, v6")
    for e in range(6): A(f"v_cvt_pk_bf16_f32 v{O+e}, v{O+2*e}, v{O+2*e+1}")
    A(f"buffer_store_dwordx4 {vr(O,4)}, v16, s[20:23], s44 offen sc1")
    A("s_mov_b32 exec_hi, 0")
    A(f"buffer_store_dwordx2 {vr(O+4,2)}, v17, s[20:23], s45 offen sc1")
    A("s_mov_b32 exec_hi, -1")
    vm.op("o"); vm.op("o")
    A(f"""
    s_mov_b32 s11, 0x40000
    s_waitcnt vmcnt({vm.need('xcc')})
    F_xc:
    v_cmp_eq_u32 vcc, 0, v{XT}
    s_cbranch_vccz F_xc2
    buffer_load_dword v{XT}, v{L4}, s[20:23], s{S_FL} offen sc1
    s_sub_u32 s11, s11, 1
    s_waitcnt vmcnt(0)
    s_cmp_lg_u32 s11, 0
    s_cbranch_scc1 F_xc
    F_xc2:
    v_cmp_ne_u32 vcc, s{S_XCC}, v{XT}
    s_mov_b32 s{S_MODE}, 0
    s_cbranch_vccz F_xc3
    s_mov_b32 s{S_MODE}, 1
    F_xc3:
    """)
    ACC, WF, AF, RA, XR = 8, 28, 68, 108, 110
    A(f"""
    s_mul_i32 s10, s{S_KH}, 51200
    v_add_u32 v{RA}, s10, v{L16}
    s_mul_i32 s31, s{S_RT16}, 20480
    s_mul_i32 s11, s{S_KH}, 10240
    s_add_u32 s31, s31, s11
    s_add_u32 s31, s31, s{S_GB}
    """)
    def cs_partial():
        A(f"""
        s_mov_b32 s28, 0x3f803f80
        v_mov_b32 v8, 0
        v_mov_b32 v9, 0
        v_mov_b32 v10, 0
        s_lshl_b32 s10, s{S_W}, 2
        s_add_u32 s10, s10, {CSP}
        v_lshl_add_u32 v7, v2, 5, s10
        """)
        for k in range(5):
            for d in range(4):
                for t in range(3):
                    A(f"v_dot2c_f32_bf16 v{8+t}, s28, v{PKD+12*k+4*t+d}")
        A("s_nop 2")
        for t in range(3): A(f"ds_write_b32 v7, v{8+t} offset:{2048*t}")
    stamp(A, 4)
    gsync(A, "F_s1", cs_partial)
    stamp(A, 5)
    for ks in range(10):
        A(f"buffer_load_dwordx4 {vr(AF+4*ks,4)}, v{L16}, s[20:23], s31 offen offset:{(ks%4)*1024} sc1")
        if ks % 4 == 3: A("s_add_u32 s31, s31, 4096")
    A(f"""
    v_and_b32 v5, 15, v2
    v_mul_u32_u24 v5, 160, v5
    v_lshrrev_b32 v6, 4, v2
    v_lshl_add_u32 v5, v6, 3, v5
    s_mul_i32 s10, s{S_RT}, 2560
    s_add_u32 s10, s10, {XL}
    v_add_u32 v5, s10, v5
    """)
    def rdC(k):
        b = WF + 20*(k & 1)
        for ct in range(5): A(f"ds_read_b128 {vr(b+4*ct,4)}, v{RA} offset:{k*5120+ct*1024}")
    rdC(0)
    for ct in range(5): A(f"ds_read_b64 {vr(XR+2*ct,2)}, v5 offset:{32*ct}")
    for k in range(10):
        if k + 1 < 10:
            rdC(k+1); A(f"s_waitcnt vmcnt({9-k}) lgkmcnt(5)")
        else:
            A("s_waitcnt vmcnt(0) lgkmcnt(0)")
        b = WF + 20*(k & 1)
        for ct in range(5):
            c = "0" if k == 0 else vr(ACC+4*ct,4)
            A(f"v_mfma_f32_16x16x32_bf16 {vr(ACC+4*ct,4)}, {vr(b+4*ct,4)}, {vr(AF+4*k,4)}, {c}")
    stamp(A, 6)
    def dump_wd():
        A(f"""
        s_mul_i32 s10, s{S_W}, 15360
        v_add_u32 v7, s10, v{L16}
        """)
        for j in range(15): A(f"ds_write_b128 v7, {vr(PKD+4*j,4)} offset:{1024*j}")
    A(f"""
    s_mul_i32 s10, s{S_RT}, 5120
    s_add_u32 s10, s10, {RED}
    v_add_u32 v1, s10, v{L16}
    s_cmp_eq_u32 s{S_KH}, 0
    s_cbranch_scc1 F_c0
    s_nop 4
    """)
    for ct in range(5): A(f"ds_write_b128 v1, {vr(ACC+4*ct,4)} offset:{1024*ct}")
    A("s_waitcnt lgkmcnt(0)")
    A("s_barrier")
    A("s_branch F_c1")
    A("F_c0:")
    A(f"""
    s_lshr_b32 s10, s{S_RT16}, 1
    s_mul_i32 s10, s10, 40
    s_mul_i32 s11, s{S_CBK}, 5
    s_add_u32 s10, s10, s11
    s_lshl_b32 s10, s10, 10
    s_add_u32 s10, s10, {G_H}
    s_add_u32 s10, s10, s{S_GB}
    s_and_b32 s11, s{S_RT16}, 1
    s_lshl_b32 s11, s11, 8
    s_add_u32 s10, s10, s11
    s_add_u32 s11, s10, 4096
    v_and_b32 v5, 15, v2
    v_lshlrev_b32 v7, 4, v5
    v_lshl_add_u32 v7, v4, 9, v7
    v_bfe_u32 v6, v2, 4, 1
    v_lshl_add_u32 v7, v6, 3, v7
    v_lshlrev_b32 v5, 3, v5
    v_lshl_add_u32 v{AF}, v4, 2, v5
    s_lshl_b32 s31, s{S_CBK}, 11
    s_lshl_b32 s28, s{S_RT16}, 7
    s_add_u32 s31, s31, s28
    s_add_u32 s31, s31, {G_ST}
    s_add_u32 s31, s31, s{S_GB}
    s_mov_b32 s28, 0x3f803f80
    v_mov_b32 v{AF+1}, 0
    v_mov_b32 v{AF+2}, 0
    """)
    for ct in range(5):
        a = ACC + 4*ct
        A(f"""
        v_lshlrev_b32 v5, 16, v{XR+2*ct}
        v_and_b32 v6, 0xffff0000, v{XR+2*ct}
        v_add_f32 v{a}, v{a}, v5
        v_add_f32 v{a+1}, v{a+1}, v6
        v_lshlrev_b32 v5, 16, v{XR+2*ct+1}
        v_and_b32 v6, 0xffff0000, v{XR+2*ct+1}
        v_add_f32 v{a+2}, v{a+2}, v5
        v_add_f32 v{a+3}, v{a+3}, v6
        """)
    A("s_barrier")
    for ct in range(5): A(f"ds_read_b128 {vr(WF+4*ct,4)}, v1 offset:{1024*ct}")
    for ct in range(5):
        a = ACC + 4*ct
        A(f"s_waitcnt lgkmcnt({4-ct})")
        A(f"v_pk_add_f32 {vr(a,2)}, {vr(a,2)}, {vr(WF+4*ct,2)}")
        A(f"v_pk_add_f32 {vr(a+2,2)}, {vr(a+2,2)}, {vr(WF+4*ct+2,2)}")
        A(f"v_cvt_pk_bf16_f32 v{a}, v{a}, v{a+1}")
        A(f"v_cvt_pk_bf16_f32 v{a+1}, v{a+2}, v{a+3}")
        if ct < 4: A(f"buffer_store_dwordx2 {vr(a,2)}, v7, s[20:23], s10 offen offset:{1024*ct}")
        else:      A(f"buffer_store_dwordx2 {vr(a,2)}, v7, s[20:23], s11 offen")
    for ct in range(5):
        a = ACC + 4*ct
        for e in range(2):
            A(f"v_dot2c_f32_bf16 v{AF+1}, s28, v{a+e}")
            A(f"v_dot2c_f32_bf16 v{AF+2}, v{a+e}, v{a+e}")
    A(f"""
    s_nop 3
    v_permlane32_swap_b32 v{AF+1}, v{AF+2}
    s_nop 1
    v_add_f32 v{AF+1}, v{AF+1}, v{AF+2}
    v_mov_b32 v{AF+2}, v{AF+1}
    s_nop 1
    v_permlane16_swap_b32 v{AF+1}, v{AF+2}
    s_nop 1
    v_add_f32 v{AF+1}, v{AF+1}, v{AF+2}
    buffer_store_dword v{AF+1}, v{AF}, s[20:23], s31 offen
    s_branch F_c2
    F_c1:
    """)
    dump_wd()
    A(f"""
    s_cmp_eq_u32 s{S_W}, 7
    s_cbranch_scc1 F_c2
    s_lshl_b32 s10, s{S_RT}, 11
    s_add_u32 s10, s10, {CSP}
    v_lshl_add_u32 v7, v2, 5, s10
    ds_read_b128 v[8:11], v7
    ds_read_b128 v[12:15], v7 offset:16
    s_lshl_b32 s10, s{S_RT}, 8
    s_add_u32 s10, s10, {CST}
    v_lshl_add_u32 v7, v2, 2, s10
    s_waitcnt lgkmcnt(0)
    v_pk_add_f32 v[8:9], v[8:9], v[10:11]
    v_pk_add_f32 v[12:13], v[12:13], v[14:15]
    v_pk_add_f32 v[8:9], v[8:9], v[12:13]
    v_add_f32 v5, v8, v9
    v_and_b32 v6, 0xffff0000, v5
    v_sub_f32 v6, v5, v6
    s_mov_b32 s10, 0x07060302
    v_perm_b32 v5, v6, v5, s10
    ds_write_b32 v7, v5
    F_c2:
    """)
    ACCD, WFD, STT, RAD, AFD = 8, 56, 92, 100, 128
    NR = 10
    A(f"""
    v_add_u32 v{RAD}, 61440, v{L16}
    s_mul_i32 s31, s{S_W}, 40960
    s_add_u32 s31, s31, {G_H}
    s_add_u32 s31, s31, s{S_GB}
    v_lshlrev_b32 v5, 3, v3
    v_lshl_add_u32 v{RAD+1}, v4, 13, v5
    s_lshl_b32 s30, s{S_W}, 8
    s_add_u32 s30, s30, {G_ST}
    s_add_u32 s30, s30, s{S_GB}
    """)
    def dump_late():
        A(f"s_cmp_ge_u32 s{S_W}, 4")
        A("s_cbranch_scc1 F_s2_done")
        dump_wd()
        A("s_waitcnt lgkmcnt(0)")
    def dump_w0():
        dump_wd()
    stamp(A, 7)
    sync(A, 2, "F_s2", dump_late, dump_w0)
    stamp(A, 8)
    for k in range(NR):
        A(f"buffer_load_dwordx4 {vr(AFD+4*k,4)}, v{L16}, s[20:23], s31 offen offset:{(k%4)*1024} sc1")
        if k % 4 == 3: A("s_add_u32 s31, s31, 4096")
    A(f"s_add_u32 s31, s31, {(NR%4)*1024}")
    for i in range(4):
        if i < 2: A(f"buffer_load_dwordx2 {vr(STT+2*i,2)}, v{RAD+1}, s[20:23], s30 offen offset:{2048*i} sc1")
        else:
            if i == 2: A("s_add_u32 s30, s30, 4096")
            A(f"buffer_load_dwordx2 {vr(STT+2*i,2)}, v{RAD+1}, s[20:23], s30 offen offset:{2048*(i-2)} sc1")
    def rdD(ks, t):
        b = WFD + 12*(ks % 3)
        if ks < 20: A(f"ds_read_b128 {vr(b+4*t,4)}, v{L16} offset:{ks*3072+t*1024}")
        else:       A(f"ds_read_b128 {vr(b+4*t,4)}, v{RAD} offset:{(ks-20)*3072+t*1024}")
    vm.clear()
    for k in range(NR): vm.op(f"a{k}")
    for i in range(4): vm.op("st")
    for k in range(2):
        for t in range(3): rdD(k, t)
    for ks in range(40):
        A(f"s_waitcnt vmcnt({vm.need(f'a{ks}')}) lgkmcnt({3 if ks < 39 else 0})")
        b = WFD + 12*(ks % 3)
        a = AFD + 4*(ks % NR)
        for t in range(3):
            c = "0" if ks == 0 else vr(ACCD+16*t,16)
            A(f"v_mfma_f32_32x32x16_bf16 {vr(ACCD+16*t,16)}, {vr(b+4*t,4)}, {vr(a,4)}, {c}")
            if ks + 2 < 40: rdD(ks+2, t)
        if ks + NR < 40:
            A(f"buffer_load_dwordx4 {vr(a,4)}, v{L16}, s[20:23], s31 offen sc1")
            A("s_add_u32 s31, s31, 1024")
            vm.op(f"a{ks+NR}")
    stamp(A, 9)
    T = WFD + 12
    c1 = -2.0*math.sqrt(2/math.pi)*math.log2(math.e)
    c3 = c1*0.044715
    SX, SQ = STT, STT+1
    A(f"""
    v_lshlrev_b32 v1, 2, v2
    v_add_u32 v1, {CST}, v1
    ds_read2_b32 {vr(T+6,2)}, v1 offset0:0 offset1:0
    ds_read2_b32 {vr(T+8,2)}, v1 offset0:64 offset1:64
    ds_read2_b32 {vr(T+10,2)}, v1 offset0:128 offset1:128
    v_add_f32 v{STT}, v{STT}, v{STT+2}
    v_add_f32 v{STT+1}, v{STT+1}, v{STT+3}
    v_add_f32 v{STT+4}, v{STT+4}, v{STT+6}
    v_add_f32 v{STT+5}, v{STT+5}, v{STT+7}
    v_add_f32 v{STT}, v{STT}, v{STT+4}
    v_add_f32 v{STT+1}, v{STT+1}, v{STT+5}
    v_mov_b32 v{STT+2}, v{STT}
    v_mov_b32 v{STT+3}, v{STT+1}
    s_nop 1
    v_permlane32_swap_b32 v{STT}, v{STT+2}
    v_permlane32_swap_b32 v{STT+1}, v{STT+3}
    s_nop 1
    v_add_f32 v{SX}, v{STT}, v{STT+2}
    v_add_f32 v{SQ}, v{STT+1}, v{STT+3}
    v_mul_f32 v{SX}, {f32(-1/640)}, v{SX}    ; -mean
    v_mul_f32 v{SQ}, {f32(1/640)}, v{SQ}
    v_fma_f32 v{SQ}, -v{SX}, v{SX}, v{SQ}
    v_max_f32 v{SQ}, 0, v{SQ}
    v_add_f32 v{SQ}, {f32(EPS)}, v{SQ}
    v_rsq_f32 v{STT+2}, v{SQ}                ; a
    s_mov_b32 s11, 0x03020302
    v_and_b32 v5, 0xffff0000, v{SX}
    v_sub_f32 v5, v{SX}, v5
    v_perm_b32 v{T+4}, v{SX}, v{SX}, s11
    v_perm_b32 v{T+5}, v5, v5, s11
    s_waitcnt lgkmcnt(0)
    s_nop 0
    """)
    for t in range(3):
        A(f"v_mfma_f32_32x32x8_bf16 {vr(ACCD+16*t,16)}, {vr(T+6+2*t,2)}, {vr(T+4,2)}, {vr(ACCD+16*t,16)}")
    A1, A3, IA2 = STT+3, STT+4, SQ
    A(f"""
    v_mul_f32 v{A1}, {f32(c1)}, v{STT+2}
    v_mul_f32 v{A3}, v{STT+2}, v{STT+2}
    v_mul_f32 v{A3}, v{A3}, v{STT+2}
    v_mul_f32 v{A3}, {f32(c3)}, v{A3}
    v_and_b32 v5, 15, v2
    v_lshlrev_b32 v5, 4, v5
    v_lshl_add_u32 v5, v4, 8, v5
    v_bfe_u32 v6, v2, 4, 1
    v_mul_u32_u24 v6, 49152, v6
    v_add_u32 v1, v5, v6
    s_mul_i32 s31, s{S_W}, 98304
    s_mul_i32 s11, s{S_IDX}, 1536
    s_add_u32 s31, s31, s11
    s_add_u32 s31, s31, {G_G}
    s_add_u32 s31, s31, s{S_GB}
    """)
    E = WFD + 24
    for t in range(3):
        g = ACCD + 16*t; u = g + 8
        for e in range(8): A(f"v_mul_f32 v{E+e}, v{g+e}, v{g+e}")
        for e in range(8): A(f"v_fma_f32 v{E+e}, v{E+e}, v{A3}, v{A1}")
        for e in range(8): A(f"v_mul_f32 v{E+e}, v{E+e}, v{g+e}")
        for e in range(8): A(f"v_exp_f32 v{E+e}, v{E+e}")
        for e in range(8): A(f"v_mul_f32 v{g+e}, v{g+e}, v{u+e}")
        for e in range(8): A(f"v_fma_f32 v{E+e}, v{E+e}, v{IA2}, v{IA2}")
        for e in range(8): A(f"v_rcp_f32 v{E+e}, v{E+e}")
        A("s_nop 0")
        for e in range(8): A(f"v_mul_f32 v{g+e}, v{g+e}, v{E+e}")
        for e in range(4): A(f"v_cvt_pk_bf16_f32 v{u+e}, v{g+2*e}, v{g+2*e+1}")
        A(f"buffer_store_dwordx4 {vr(u,4)}, v1, s[20:23], s31 offen offset:{512*t}")
    ACE, AR = 8, 88
    HR, IL, IO = 248, 120, 112
    def e_prep():
        for j in range(15): we_load(PKD, j, False)()
        A(f"""
        s_mul_i32 s10, s{S_RT4}, 81920
        s_mul_i32 s11, s{S_CBK}, 5120
        s_add_u32 s10, s10, s11
        s_add_u32 s10, s10, {G_H}
        s_add_u32 s10, s10, s{S_GB}
        """)
        for rnd in range(3):
            A(f"""
            v_add_u32 v5, {512*rnd}, v0
            v_mul_u32_u24 v6, 3277, v5
            v_lshrrev_b32 v6, 16, v6
            v_mul_u32_u24 v7, 20, v6
            v_sub_u32 v5, v5, v7              ; q
            v_lshrrev_b32 v7, 5, v6
            v_mul_u32_u24 v7, 40960, v7
            v_and_b32 v1, 31, v6
            v_lshl_add_u32 v7, v1, 4, v7
            v_lshrrev_b32 v1, 1, v5
            v_lshl_add_u32 v7, v1, 9, v7
            v_and_b32 v1, 1, v5
            v_lshl_add_u32 v7, v1, 3, v7
            buffer_load_dwordx2 {vr(HR+2*rnd,2)}, v7, s[20:23], s10 offen sc1
            v_bfe_u32 v1, v6, 1, 2
            v_xor_b32 v1, v1, v5
            v_mul_u32_u24 v7, 320, v6
            v_lshl_add_u32 v{IL+rnd}, v1, 4, v7
            v_mul_u32_u24 v7, 1280, v6
            v_lshl_add_u32 v{(123,126,127)[rnd]}, v5, 3, v7
            """)
    A(f"s_cmp_ge_u32 s{S_W}, 4")
    A("s_cbranch_scc1 F_e0")
    e_prep()
    A("F_e0:")
    A(f"""
    s_mul_i32 s28, s{S_RT4}, {4*49152}
    s_mul_i32 s11, s{S_W}, 6144
    s_add_u32 s28, s28, s11
    s_add_u32 s28, s28, {G_G}
    s_add_u32 s28, s28, s{S_GB}
    s_add_u32 s29, s28, 49152
    s_add_u32 s30, s29, 49152
    s_add_u32 s31, s30, 49152
    """)
    def e_shadow():
        A(f"s_cmp_lt_u32 s{S_W}, 4")
        A("s_cbranch_scc1 F_s3_done")
        e_prep()
    stamp(A, 10)
    sync(A, 3, "F_s3", e_shadow)
    stamp(A, 11)
    vm.clear()
    wreg = lambda s_: (PKE + 20*s_) if s_ < 3 else (PKD + 20*(s_-3))
    areg = lambda s_: (AR + 16*s_) if s_ < 2 else wreg(s_-2)
    def aloadE(s_):
        if s_ == 4:
            for r in range(4): A(f"s_add_u32 s{28+r}, s{28+r}, 4096")
        for rt in range(4):
            A(f"buffer_load_dwordx4 {vr(areg(s_)+4*rt,4)}, v{L16}, s[20:23], s{28+rt} offen offset:{(s_%4)*1024} sc1")
            vm.op(f"a{s_}_{rt}")
    aloadE(0); aloadE(1)
    for s_ in range(6):
        for rt in range(4):
            A(f"s_waitcnt vmcnt({vm.need(f'a{s_}_{rt}')})")
            for ct in range(5):
                acc = vr(ACE + 20*rt + 4*ct, 4)
                c = "0" if s_ == 0 else acc
                A(f"v_mfma_f32_16x16x32_bf16 {acc}, {vr(wreg(s_)+4*ct,4)}, {vr(areg(s_)+4*rt,4)}, {c}")
        if s_ + 2 < 6: aloadE(s_+2)
    A(f"""
    v_and_b32 v7, 15, v2
    v_mul_u32_u24 v7, 320, v7
    v_lshrrev_b32 v5, 4, v2
    v_bfe_u32 v6, v2, 1, 2
    v_xor_b32 v5, v5, v6
    v_lshl_add_u32 v7, v5, 4, v7
    s_mul_i32 s10, s{S_W}, 20480
    v_add_u32 v7, s10, v7
    """)
    for rt in range(4):
        for ct in range(5): A(f"ds_write_b128 v7, {vr(ACE+20*rt+4*ct,4)} offset:{5120*rt+64*ct}")
    A(f"""
    s_mov_b32 s10, s69
    """)
    for rnd in range(3):
        A(f"v_add_u32 v{AR+2*rnd}, 61440, v{IL+rnd}")
        A(f"v_add_u32 v{AR+2*rnd+1}, 122880, v{IL+rnd}")
    A("s_waitcnt lgkmcnt(0)")
    A("s_barrier")
    def fin_read(rnd):
        b = 128 + 32*rnd
        for p in range(8):
            ad = (IL+rnd, AR+2*rnd, AR+2*rnd+1)[p//3]
            A(f"ds_read_b128 {vr(b+4*p,4)}, v{ad} offset:{20480*(p%3)}")
    def fin_sum(rnd):
        b = 128 + 32*rnd
        for st_ in (16, 8, 4):
            for o in range(0, st_, 2):
                A(f"v_pk_add_f32 {vr(b+o,2)}, {vr(b+o,2)}, {vr(b+st_+o,2)}")
        A(f"""
        v_lshlrev_b32 v8, 16, v{HR+2*rnd}
        v_and_b32 v9, 0xffff0000, v{HR+2*rnd}
        v_lshlrev_b32 v10, 16, v{HR+2*rnd+1}
        v_and_b32 v11, 0xffff0000, v{HR+2*rnd+1}
        v_pk_add_f32 {vr(b,2)}, {vr(b,2)}, v[8:9]
        v_pk_add_f32 {vr(b+2,2)}, {vr(b+2,2)}, v[10:11]
        v_cvt_pk_bf16_f32 v{b}, v{b}, v{b+1}
        v_cvt_pk_bf16_f32 v{b+1}, v{b+2}, v{b+3}
        buffer_store_dwordx2 {vr(b,2)}, v{(123,126,127)[rnd]}, s[40:43], s10 offen
        """)
    fin_read(0)
    A("s_waitcnt lgkmcnt(1)")
    fin_read(1)
    A("s_waitcnt lgkmcnt(8)")
    fin_sum(0)
    A(f"s_cmp_ge_u32 s{S_W}, 4")
    A("s_cbranch_scc1 F_f1")
    A("s_waitcnt lgkmcnt(1)")
    fin_read(2)
    A("s_waitcnt lgkmcnt(8)")
    fin_sum(1)
    A("s_waitcnt lgkmcnt(0)")
    fin_sum(2)
    A("s_branch F_fin")
    A("F_f1:")
    A("s_waitcnt lgkmcnt(0)")
    fin_sum(1)
    A("F_fin:")
    if asmlib.STAMPS:
        A("s_waitcnt vmcnt(0)")
        asmlib.stamp(A, 1)
    stamp_flush(A, 1, 12)
    A("F_end:")
    A("s_endpgm")
    A("F_slow:")
    KS0, KS1 = 44, 20
    A(f"""
    v_lshlrev_b32 v{AK1}, 3, v3
    v_add_u32 v{AK1}, 1024, v{AK1}
    v_subrev_u32 v{AV}, {baseV}, v{AV}
    v_mov_b32 v5, 0xff800000
    s_mov_b32 s31, 0
    s_mov_b32 s10, s29
    """)
    for r in range(16): A(f"v_mov_b32 v{O+r}, 0")
    A("F_sloop:")
    A(f"""
    buffer_load_dwordx4 {vr(KS0,4)}, v{L16}, s[20:23], s10 offen
    buffer_load_dwordx2 {vr(KS1,2)}, v{AK1}, s[20:23], s10 offen
    s_mov_b64 exec, s[32:33]
    buffer_load_dwordx4 {vr(V0,4)}, v{AV}, s[20:23], s10 offen
    buffer_load_dwordx4 {vr(V1,4)}, v{AV}, s[20:23], s10 offen offset:640
    s_mov_b64 exec, -1
    s_waitcnt vmcnt(0)
    v_mfma_f32_32x32x16_bf16 {vr(SA,16)}, {vr(KS0,4)}, {vr(Q0,4)}, 0
    v_mfma_f32_32x32x8_bf16 {vr(SA,16)}, {vr(KS1,2)}, {vr(Q1,2)}, {vr(SA,16)}
    s_nop 11
    v_max3_f32 v6, v{SA}, v{SA+1}, v5
    """)
    for r in range(2, 16, 2): A(f"v_max3_f32 v6, v{SA+r}, v{SA+r+1}, v6")
    A(f"""
    v_mov_b32 v7, v6
    s_nop 1
    v_permlane32_swap_b32 v6, v7
    s_nop 1
    v_max_f32 v6, v6, v7
    v_sub_f32 v7, v5, v6
    v_exp_f32 v7, v7
    v_mov_b32 v5, v6
    """)
    for r in range(16): A(f"v_mul_f32 v{O+r}, v{O+r}, v7")
    for r in range(16): A(f"v_sub_f32 v{SA+r}, v{SA+r}, v6")
    for r in range(16): A(f"v_exp_f32 v{SA+r}, v{SA+r}")
    A("s_nop 0")
    for e in range(8): A(f"v_cvt_pk_bf16_f32 v{P0+e}, v{SA+2*e}, v{SA+2*e+1}")
    A(f"""
    s_nop 1
    v_mfma_f32_32x32x16_bf16 {vr(O,16)}, {vr(V0,4)}, {vr(P0,4)}, {vr(O,16)}
    v_mfma_f32_32x32x16_bf16 {vr(O,16)}, {vr(V1,4)}, {vr(P1,4)}, {vr(O,16)}
    s_add_u32 s10, s10, 2560
    s_add_u32 s31, s31, 1
    s_cmp_lt_u32 s31, 64
    s_nop 8
    s_cbranch_scc1 F_sloop
    s_nop 3
    s_branch F_out
    F_kend:
    """)
    return dict(name=name, grid=256, block=512, lds=163840, nvgpr=256)
```

```python
from asmlib import *
import asmlib
from layout import *
import os
OPT = set(os.environ.get('OPT','').split(','))

def gen_k1(A, name="qkv_kernel"):
    NST = 4
    STG = 32768
    TAB = NST * STG
    kernel_begin(A, name)
    stamp_rt(A,0); stamp(A,0)
    A(f"""
    s_cmp_ge_u32 s2, 256
    s_cbranch_scc1 K1_end
    s_load_dwordx4 s[4:7], s[0:1], 0
    s_load_dwordx2 s[8:9], s[0:1], 72
    v_lshrrev_b32 v1, 6, v0
    v_and_b32 v2, 63, v0              ; lane
    s_and_b32 s3, s2, 7
    v_readfirstlane_b32 s24, v1       ; wave
    s_lshr_b32 s10, s2, 3             ; idx
    s_and_b32 s11, s10, 3             ; r
    s_lshr_b32 s10, s10, 2            ; c
    s_lshr_b32 s27, s3, 1
    s_lshl_b32 s27, s27, 2
    s_add_u32 s27, s27, s11           ; rb
    s_and_b32 s28, s3, 1
    s_lshl_b32 s28, s28, 3
    s_add_u32 s28, s28, s10           ; cb
    s_cmp_ge_u32 s28, 15
    s_cbranch_scc1 K1_spare
    v_and_b32 v3, 31, v2              ; t
    v_lshrrev_b32 v4, 5, v2           ; h
    s_mov_b32 s36, {STG}
    s_mov_b32 s34, 0
    s_cmp_lt_u32 s24, 4
    s_cbranch_scc1 K1_comp
    s_load_dwordx4 s[44:47], s[0:1], 32
    s_load_dwordx2 s[48:49], s[0:1], 16
    s_sub_u32 s25, s24, 4             ; lw
    s_mul_i32 s31, s11, 5
    s_add_u32 s31, s31, 1
    s_lshr_b32 s31, s31, 1
    s_add_u32 s31, s31, s10
    s_sub_u32 s11, s31, 10
    s_cmp_ge_u32 s31, 10
    s_cselect_b32 s31, s11, s31
    s_lshl_b32 s29, s27, 7
    s_lshl_b32 s11, s25, 5
    s_add_u32 s29, s29, s11
    s_mul_i32 s29, s29, 1280
    s_mul_i32 s30, s25, {16*3840}
    s_lshl_b32 s11, s28, 8
    s_add_u32 s30, s30, s11
    s_lshl_b32 s33, s25, 12
    s_mov_b32 s32, 0
    v_lshrrev_b32 v16, 3, v2
    v_lshrrev_b32 v17, 4, v2
    v_mul_u32_u24 v5, 1280, v16
    v_and_b32 v6, 7, v2
    v_xor_b32 v6, v6, v17
    v_lshl_add_u32 v8, v6, 4, v5
    v_xor_b32 v6, 4, v6
    v_lshl_add_u32 v9, v6, 4, v5
    v_add_u32 v9, {8*1280-1024}, v9
    v_add_u32 v10, {16*1280-2048}, v8
    v_add_u32 v11, {16*1280-2048}, v9
    v_mul_u32_u24 v5, 3840, v17
    v_and_b32 v6, 15, v2
    v_lshlrev_b32 v7, 2, v17
    v_xor_b32 v6, v6, v7
    v_lshl_add_u32 v12, v6, 4, v5
    v_add_u32 v13, {4*3840-1024}, v12
    v_add_u32 v14, {8*3840-2048}, v12
    v_add_u32 v15, {12*3840-3072}, v12
    s_waitcnt lgkmcnt(0)
    """)
    srd(A, 12, 4, 2048*640*2)
    srd(A, 16, 6, 640*1920*2)
    def dma():
        A(f"""
        s_lshl_b32 s10, s31, 7
        s_add_u32 s10, s10, s29
        s_mul_i32 s11, s31, {64*3840}
        s_add_u32 s11, s11, s30
        s_mov_b32 m0, s33
        s_add_u32 s32, s32, 1
        buffer_load_dwordx4 v8, s[12:15], s10 offen lds
        buffer_load_dwordx4 v9, s[12:15], s10 offen offset:1024 lds
        buffer_load_dwordx4 v10, s[12:15], s10 offen offset:2048 lds
        buffer_load_dwordx4 v11, s[12:15], s10 offen offset:3072 lds
        s_add_u32 m0, s33, 16384
        s_add_u32 s31, s31, 1
        buffer_load_dwordx4 v12, s[16:19], s11 offen lds
        buffer_load_dwordx4 v13, s[16:19], s11 offen offset:1024 lds
        buffer_load_dwordx4 v14, s[16:19], s11 offen offset:2048 lds
        buffer_load_dwordx4 v15, s[16:19], s11 offen offset:3072 lds
        s_cmp_eq_u32 s31, 10
        s_cselect_b32 s31, 0, s31
        s_add_u32 s33, s33, {STG}
        s_and_b32 s33, s33, {NST*STG-1}
        """)
    PD = int(os.environ.get('PD', 2))
    stamp(A,1)
    A("K1_pro:")
    dma()
    A(f"s_cmp_lt_u32 s32, {PD}")
    A("s_cbranch_scc1 K1_pro")
    A(f"""
    v_bfe_u32 v5, v2, 1, 3
    v_xor_b32 v5, v5, v4
    v_lshlrev_b32 v5, 4, v5
    v_lshl_add_u32 v5, v3, 7, v5
    s_lshl_b32 s10, s25, 12
    v_add_u32 v16, s10, v5
    v_xor_b32 v17, 32, v16
    v_xor_b32 v18, 64, v16
    v_xor_b32 v19, 96, v16
    v_mov_b32 v20, 0
    v_mov_b32 v21, 0
    v_mov_b32 v22, 0
    v_mov_b32 v23, 0
    """)
    A("s_mov_b32 s38, 0x3f803f80")
    stamp(A,2)
    def lhead():
        for k in range(4): A(f"ds_read_b128 {vr(32+4*k,4)}, v{16+k}")
        A(f"""
        s_add_u32 s34, s34, 1
        s_and_b32 s37, s34, {NST-1}
        s_cmp_eq_u32 s37, 0
        s_cselect_b32 s35, {(-(NST-1)*STG) & 0xffffffff:#x}, s36
        """)
        for k in range(4): A(f"v_add_u32 v{16+k}, s35, v{16+k}")
    def lstats():
        A("s_waitcnt lgkmcnt(0)")
        for d in range(16):
            A(f"v_dot2c_f32_bf16 v{20+(d&1)}, s38, v{32+d}")
            A(f"v_dot2c_f32_bf16 v{22+(d&1)}, v{32+d}, v{32+d}")
    A("K1_lloop:")
    A(f"s_waitcnt vmcnt({8*(PD-1)})")
    A("s_barrier")
    lhead()
    dma()
    lstats()
    A(f"s_cmp_lt_u32 s34, {10-PD}")
    A("s_cbranch_scc1 K1_lloop")
    PK = TAB + 4096
    A(f"""
    s_waitcnt vmcnt(8)
    s_barrier
    """)
    lhead()
    A(f"""
    s_mul_i32 s40, s27, 15
    s_add_u32 s40, s40, s28           ; task T
    s_mul_i32 s41, s40, 171
    s_lshr_b32 s41, s41, 10           ; ks = T/6
    s_mul_i32 s10, s41, 6
    s_sub_u32 s42, s40, s10           ; fr
    s_lshl_b32 s42, s42, 2
    s_add_u32 s42, s42, s25
    s_mul_i32 s10, s41, {16*3072}
    s_lshl_b32 s11, s42, 7
    s_add_u32 s10, s10, s11
    v_lshrrev_b32 v8, 3, v2
    v_and_b32 v9, 7, v2
    v_lshlrev_b32 v9, 4, v9
    v_mul_u32_u24 v10, 3072, v8
    v_add_u32 v10, v10, v9
    v_add_u32 v11, {8*3072-1024}, v10
    s_lshl_b32 s43, s25, 12
    s_add_u32 s43, s43, {PK}
    s_mov_b32 m0, s43
    s_mov_b32 s12, s44
    s_mov_b32 s13, s45
    s_mov_b32 s14, {640*1536*2}
    s_mov_b32 s16, s46
    s_mov_b32 s17, s47
    s_mov_b32 s18, {640*1536*2}
    buffer_load_dwordx4 v10, s[12:15], s10 offen lds
    buffer_load_dwordx4 v11, s[12:15], s10 offen offset:1024 lds
    s_add_u32 m0, s43, 2048
    s_cmp_lt_u32 s40, 200
    buffer_load_dwordx4 v10, s[16:19], s10 offen lds
    buffer_load_dwordx4 v11, s[16:19], s10 offen offset:1024 lds
    s_cselect_b32 s39, 1, 0
    s_and_b32 s10, s40, 3
    s_cmp_eq_u32 s10, s25
    s_cselect_b32 s39, s39, 0
    s_cmp_eq_u32 s39, 0
    s_cbranch_scc1 K1_nowo
    s_mul_i32 s50, s40, 205
    s_lshr_b32 s50, s50, 11           ; ks32 = T/10
    s_mul_i32 s10, s50, 10
    s_sub_u32 s51, s40, s10
    s_lshl_b32 s11, s51, 7
    s_cmp_ge_u32 s50, 16
    s_cbranch_scc1 K1_wo2
    s_mul_i32 s10, s50, {40*1280}
    v_mul_u32_u24 v12, 1280, v8
    v_add_u32 v12, v12, v9
    v_add_u32 v13, {8*1280-1024}, v12
    v_add_u32 v14, {20*1280-2048}, v12
    v_add_u32 v15, {28*1280-3072}, v12
    s_branch K1_wo3
    K1_wo2:
    s_sub_u32 s10, s50, 16
    s_mul_i32 s10, s10, {160*1280}
    v_lshrrev_b32 v12, 2, v8
    v_mul_u32_u24 v12, 40, v12
    v_and_b32 v13, 3, v8
    v_add_u32 v12, v12, v13
    v_add_u32 v12, 16, v12
    v_mul_u32_u24 v12, 1280, v12
    v_add_u32 v12, v12, v9
    v_add_u32 v13, {20*1280-1024}, v12
    v_add_u32 v14, {80*1280-2048}, v12
    v_add_u32 v15, {100*1280-3072}, v12
    K1_wo3:
    s_add_u32 s10, s10, s11
    s_mov_b32 m0, {PK+16384}
    s_mov_b32 s16, s48
    s_mov_b32 s17, s49
    s_mov_b32 s18, {640*640*2}
    buffer_load_dwordx4 v12, s[16:19], s10 offen lds
    buffer_load_dwordx4 v13, s[16:19], s10 offen offset:1024 lds
    buffer_load_dwordx4 v14, s[16:19], s10 offen offset:2048 lds
    buffer_load_dwordx4 v15, s[16:19], s10 offen offset:3072 lds
    """)
    lstats()
    A("s_waitcnt vmcnt(8)")
    A("s_branch K1_t2")
    A("K1_nowo:")
    lstats()
    A("s_waitcnt vmcnt(4)")
    A("K1_t2:")
    A("s_barrier")
    lhead()
    lstats()
    A("s_nop 3")
    stamp(A,3)
    A(f"""
    v_add_f32 v20, v20, v21
    v_add_f32 v22, v22, v23
    v_mov_b32 v21, v20
    v_mov_b32 v23, v22
    s_nop 1
    v_permlane32_swap_b32 v20, v21
    v_permlane32_swap_b32 v22, v23
    s_nop 1
    v_add_f32 v20, v20, v21
    v_add_f32 v22, v22, v23
    v_mul_f32 v20, {f32(1/640)}, v20   ; mean
    v_mul_f32 v22, {f32(1/640)}, v22
    v_fma_f32 v22, -v20, v20, v22
    v_max_f32 v22, 0, v22
    v_add_f32 v22, {f32(EPS)}, v22
    v_rsq_f32 v22, v22
    s_cmp_lt_u32 s28, 5
    s_cselect_b32 s10, {f32(QSCALE)}, 1.0
    v_mul_f32 v22, s10, v22            ; a
    v_mul_f32 v23, v20, v22
    v_sub_f32 v23, 0, v23              ; b = -mean*a
    s_lshl_b32 s10, s25, 7
    s_add_u32 s10, s10, {TAB}
    v_lshl_add_u32 v5, v3, 2, s10
    ds_write_b32 v5, v22
    ds_write_b32 v5, v23 offset:512
    s_lshl_b32 s10, s25, 8
    s_add_u32 s10, s10, {TAB+1536}
    v_lshl_add_u32 v5, v3, 3, s10
    ds_write_b64 v5, v[22:23]
    s_waitcnt lgkmcnt(0)
    s_barrier
    """)
    stamp(A,4)
    srd(A, 20, 8, WS_USED)
    A(f"""
    v_bfe_u32 v5, v2, 2, 2
    v_lshl_add_u32 v6, v4, 3, v5
    v_lshlrev_b32 v6, 7, v6
    v_bfe_u32 v7, v2, 4, 1
    v_lshl_add_u32 v6, v7, 11, v6
    v_and_b32 v8, 3, v2
    v_lshl_add_u32 v6, v8, 3, v6
    v_add_u32 v6, s43, v6
    v_lshl_add_u32 v5, v7, 2, v5
    v_lshl_add_u32 v5, v4, 4, v5
    v_lshlrev_b32 v5, 7, v5
    v_lshl_add_u32 v5, v8, 3, v5
    v_add_u32 v5, {PK+16384}, v5
    v_lshlrev_b32 v1, 4, v2
    s_mul_i32 s41, s41, 3072
    s_add_u32 s41, s41, {WGP}
    s_lshl_b32 s42, s42, 2
    s_waitcnt vmcnt(0)
    """)
    for t in range(4):
        A(f"ds_read_b64_tr_b16 {vr(32+4*t,2)}, v6 offset:{32*t}")
        A(f"ds_read_b64_tr_b16 {vr(34+4*t,2)}, v6 offset:{32*t+512}")
    for t in range(4):
        A(f"""
        s_add_u32 s10, s42, {t}
        s_mul_i32 s11, s10, 171
        s_lshr_b32 s11, s11, 9            ; b/3
        s_mul_i32 s29, s11, 3
        s_sub_u32 s10, s10, s29
        s_lshl_b32 s10, s10, 10
        s_mul_i32 s11, s11, 122880
        s_add_u32 s10, s10, s11
        s_add_u32 s10, s10, s41
        s_waitcnt lgkmcnt({6-2*t})
        buffer_store_dwordx4 {vr(32+4*t,4)}, v1, s[20:23], s10 offen
        """)
    A(f"""
    s_cmp_eq_u32 s39, 0
    s_cbranch_scc1 K1_lend
    s_mul_i32 s50, s50, 5120
    s_add_u32 s50, s50, {WOP}
    s_lshl_b32 s51, s51, 2
    """)
    for t in range(4):
        A(f"ds_read_b64_tr_b16 {vr(48+4*t,2)}, v5 offset:{32*t}")
        A(f"ds_read_b64_tr_b16 {vr(50+4*t,2)}, v5 offset:{32*t+1024}")
    for t in range(4):
        A(f"""
        s_add_u32 s10, s51, {t}
        s_mul_i32 s11, s10, 205
        s_lshr_b32 s11, s11, 10           ; j/5
        s_mul_i32 s29, s11, 5
        s_sub_u32 s10, s10, s29
        s_lshl_b32 s10, s10, 10
        s_mul_i32 s11, s11, 102400
        s_add_u32 s10, s10, s11
        s_add_u32 s10, s10, s50
        s_waitcnt lgkmcnt({6-2*t})
        buffer_store_dwordx4 {vr(48+4*t,4)}, v1, s[20:23], s10 offen
        """)
    A("K1_lend:")
    A("s_waitcnt vmcnt(0)" if asmlib.STAMPS else ""); stamp(A,5); stamp_flush(A,0,6)
    A("s_endpgm")
    A("K1_comp:")
    RA0, RA1, RB0, RB1 = 16, 20, 24, 25
    SEL, CSA = 28, 8
    XF, WF, ACC = 32, 48, 64
    SAD = 128
    A(f"""
    s_lshr_b32 s25, s24, 1            ; wr
    s_and_b32 s26, s24, 1             ; wc
    s_lshl_b32 s38, s25, 1
    s_add_u32 s39, s38, 1
    s_lshl_b32 s10, s26, 1
    s_add_u32 s40, s10, s25
    s_xor_b32 s41, s40, 1
    v_bfe_u32 v5, v2, 1, 3
    v_xor_b32 v5, v5, v4
    v_lshlrev_b32 v5, 4, v5
    v_lshl_add_u32 v5, v3, 7, v5
    s_lshl_b32 s10, s38, 12
    v_add_u32 v{RA0}, s10, v5
    v_xor_b32 v{RA0+1}, 32, v{RA0}
    v_xor_b32 v{RA0+2}, 64, v{RA0}
    v_xor_b32 v{RA0+3}, 96, v{RA0}
    v_bfe_u32 v5, v2, 2, 2
    v_lshl_add_u32 v6, v4, 3, v5
    v_lshlrev_b32 v6, 8, v6
    v_xor_b32 v7, s40, v5
    v_lshl_add_u32 v6, v7, 6, v6
    v_bfe_u32 v7, v2, 4, 1
    v_lshl_add_u32 v6, v7, 5, v6
    v_and_b32 v7, 3, v2
    v_lshl_add_u32 v6, v7, 3, v6
    v_add_u32 v{RB0}, 16384, v6
    v_xor_b32 v{RB1}, 64, v{RB0}
    v_and_b32 v5, 15, v2
    v_bfe_u32 v6, v2, 4, 1
    v_cmp_eq_u32 vcc, v5, v6
    v_mov_b32 v7, 0x3f803f80
    s_sub_u32 s10, s28, 5
    s_cmp_ge_u32 s28, 5
    v_cndmask_b32 v{SEL}, 0, v7, vcc
    v_cndmask_b32 v{SEL+1}, 0, v7, vcc
    v_cndmask_b32 v{SEL+2}, 0, v7, vcc
    v_cndmask_b32 v{SEL+3}, 0, v7, vcc
    s_cselect_b32 s42, s10, s28
    s_sub_u32 s10, s28, 10
    s_cmp_ge_u32 s28, 10
    s_cselect_b32 s42, s10, s42
    s_lshl_b32 s43, s27, 2
    s_add_u32 s43, s43, s38
    s_waitcnt lgkmcnt(0)
    """)
    srd(A, 20, 8, WS_USED)
    for r in list(range(CSA, CSA+4)) + list(range(XF+8, XF+16)) + list(range(WF+8, ACC + 64)):
        A(f"v_mov_b32 v{r}, 0")
    A("s_cmp_ge_u32 s28, 10")
    A("s_cbranch_scc1 K1_preV")
    A(f"""
    s_cmp_lt_u32 s28, 5
    s_cbranch_scc1 K1_isq
    s_mov_b32 s45, 163840
    s_mul_i32 s43, s43, 2560
    s_add_u32 s43, s43, {KV}
    s_add_u32 s44, s43, 2560
    s_branch K1_qk
    K1_isq:
    s_mov_b32 s45, 81920
    s_mul_i32 s43, s43, 1280
    s_add_u32 s43, s43, {QF}
    s_add_u32 s44, s43, 1280
    K1_qk:
    v_lshlrev_b32 v12, 4, v3
    v_lshlrev_b32 v13, 3, v3
    v_add_u32 v13, 1024, v13
    s_lshl_b32 s48, s42, 5
    """)
    for j in range(2):
        A(f"s_lshl_b32 s10, s{40+j}, 3")
        A("s_add_u32 s10, s10, s48")
        for g in range(4):
            d = SAD + 4*j + g
            A(f"""
            v_add_u32 v5, s10, v4
            v_mul_u32_u24 v6, 205, v5
            v_lshrrev_b32 v6, 10, v6
            v_mul_u32_u24 v7, 5, v6
            v_sub_u32 v5, v5, v7
            v_lshrrev_b32 v7, 1, v5
            v_lshl_add_u32 v7, v7, 9, v12
            v_and_b32 v14, 1, v5
            v_lshl_add_u32 v7, v14, 3, v7
            v_cmp_eq_u32 vcc, 4, v5
            v_mul_lo_u32 v6, v6, s45
            s_add_u32 s10, s10, 2
            v_cndmask_b32 v7, v7, v13, vcc
            v_add_u32 v{d}, v6, v7
            """)
    stamp(A,1); stamp(A,2)
    def reads(ks, b):
        A(f"ds_read_b128 {vr(XF+8*b,4)}, v{RA0+ks}")
        A(f"ds_read_b64_tr_b16 {vr(WF+8*b,2)}, v{RB0} offset:{ks*4096}")
        A(f"ds_read_b64_tr_b16 {vr(WF+8*b+2,2)}, v{RB0} offset:{ks*4096+1024}")
        A(f"ds_read_b128 {vr(XF+8*b+4,4)}, v{RA0+ks} offset:4096")
        A(f"ds_read_b64_tr_b16 {vr(WF+8*b+4,2)}, v{RB1} offset:{ks*4096}")
        A(f"ds_read_b64_tr_b16 {vr(WF+8*b+6,2)}, v{RB1} offset:{ks*4096+1024}")
    def mm(b, vmode, extra=None):
        ex = list(extra or [])
        for n, (i, j) in enumerate(((0,0),(0,1),(1,0),(1,1))):
            acc = vr(ACC + 32*i + 16*j, 16)
            x = vr(XF+8*b+4*i, 4); w = vr(WF+8*b+4*j, 4)
            if 'nomm' in OPT: pass
            elif vmode: A(f"v_mfma_f32_32x32x16_bf16 {acc}, {x}, {w}, {acc}")
            else:     A(f"v_mfma_f32_32x32x16_bf16 {acc}, {w}, {x}, {acc}")
            k = (len(ex) + 3 - n) // (4 - n) if ex else 0
            for s in ex[:k]: A(s)
            ex = ex[k:]
        if 'nosel' not in OPT: A(f"v_mfma_f32_16x16x32_bf16 {vr(CSA,4)}, {vr(SEL,4)}, {vr(WF+8*b,4)}, {vr(CSA,4)}")
    def loop(vmode, lab):
        A(f"{lab}:")
        A("s_waitcnt lgkmcnt(0)")
        A("s_barrier")
        reads(0, 0)
        mm(1, vmode)
        reads(1, 1)
        A("s_waitcnt lgkmcnt(6)")
        mm(0, vmode)
        reads(2, 0)
        A("s_waitcnt lgkmcnt(6)")
        mm(1, vmode)
        reads(3, 1)
        A(f"""
        s_add_u32 s34, s34, 1
        s_and_b32 s10, s34, {NST-1}
        s_cmp_eq_u32 s10, 0
        s_cselect_b32 s35, {(-(NST-1)*STG) & 0xffffffff:#x}, s36
        s_waitcnt lgkmcnt(6)
        """)
        mm(0, vmode, extra=[f"v_add_u32 v{r}, s35, v{r}" for r in (RA0, RA0+1, RA0+2, RA0+3, RB0, RB1)])
        A("s_cmp_lt_u32 s34, 10")
        A(f"s_cbranch_scc1 {lab}")
        A("s_waitcnt lgkmcnt(0)")
        mm(1, vmode)
        stamp(A,3)
        A(f"""
        s_lshl_b32 s10, s40, 7
        s_add_u32 s10, s10, {TAB+1024}
        v_lshl_add_u32 v6, v2, 2, s10
        s_mov_b64 exec, 0xffff
        s_nop 4
        ds_write2_b32 v6, v{CSA}, v{CSA+1} offset0:0 offset1:16
        s_mov_b64 exec, -1
        """)
    loop(0, "K1_loopQ")
    CSR = 32
    AB = 12
    A(f"""
    s_lshl_b32 s10, s38, 8
    s_add_u32 s10, s10, {TAB+1536}
    v_lshl_add_u32 v5, v3, 3, s10
    s_lshl_b32 s10, s40, 7
    s_add_u32 s10, s10, {TAB+1024}
    v_lshl_add_u32 v6, v4, 4, s10
    v_xor_b32 v7, 128, v6
    s_waitcnt lgkmcnt(0)
    s_barrier
    ds_read_b64 v[{AB}:{AB+1}], v5
    ds_read_b64 v[{AB+2}:{AB+3}], v5 offset:256
    """)
    for j, a in ((0, 6), (1, 7)):
        for g in range(4):
            A(f"ds_read_b128 {vr(CSR+16*j+4*g,4)}, v{a} offset:{32*g}")
    first = True
    for j in range(2):
        for g in range(4):
            A(f"s_waitcnt lgkmcnt({7-4*j-g})")
            for i in range(2):
                base = ACC + 32*i + 16*j + 4*g
                t = 16 + 4*i
                ab = vr(AB+2*i, 2)
                cs = CSR+16*j+4*g
                A(f"v_pk_mul_f32 {vr(t,2)}, {ab}, {vr(cs,2)} op_sel:[1,0] op_sel_hi:[1,1]")
                A(f"v_pk_mul_f32 {vr(t+2,2)}, {ab}, {vr(cs+2,2)} op_sel:[1,0] op_sel_hi:[1,1]")
                A(f"v_pk_fma_f32 {vr(base,2)}, {vr(base,2)}, {ab}, {vr(t,2)} op_sel_hi:[1,0,1]")
                A(f"v_pk_fma_f32 {vr(base+2,2)}, {vr(base+2,2)}, {ab}, {vr(t+2,2)} op_sel_hi:[1,0,1]")
                A(f"v_cvt_pk_bf16_f32 v{base}, v{base}, v{base+1}")
                A(f"v_cvt_pk_bf16_f32 v{base+1}, v{base+2}, v{base+3}")
                A(f"buffer_store_dwordx2 {vr(base,2)}, v{SAD+4*j+g}, s[20:23], s{43+i} offen")
    stamp(A,4); A("s_waitcnt vmcnt(0)" if asmlib.STAMPS else ""); stamp(A,5); stamp_flush(A,0,6)
    A("s_endpgm")
    A("K1_preV:")
    A(f"""
    s_mul_i32 s43, s43, 2560
    s_add_u32 s43, s43, {KV}
    s_add_u32 s44, s43, 2560
    s_lshl_b32 s48, s42, 7
    s_mov_b32 s45, 163840
    v_mul_u32_u24 v12, 320, v4
    v_add_u32 v12, 1280, v12
    """)
    for j in range(2):
        A(f"""
        s_lshl_b32 s10, s{40+j}, 5
        s_add_u32 s10, s10, s48
        v_add_u32 v5, s10, v3
        v_mul_u32_u24 v6, 3277, v5
        v_lshrrev_b32 v6, 16, v6
        v_mul_u32_u24 v7, 20, v6
        v_sub_u32 v5, v5, v7
        v_mul_lo_u32 v6, v6, s45
        v_lshl_add_u32 v5, v5, 4, v12
        v_add_u32 v{SAD+j}, v5, v6
        """)
    stamp(A,1); stamp(A,2)
    loop(1, "K1_loopV")
    A(f"""
    s_lshl_b32 s10, s40, 7
    s_add_u32 s10, s10, {TAB+1024}
    v_lshl_add_u32 v5, v3, 2, s10
    v_xor_b32 v7, 128, v5
    s_lshl_b32 s10, s38, 7
    s_add_u32 s10, s10, {TAB}
    v_lshl_add_u32 v6, v4, 4, s10
    s_waitcnt lgkmcnt(0)
    s_barrier
    ds_read_b32 v12, v5
    ds_read_b32 v13, v7
    """)
    AT, BT = 136, 168
    for i in range(2):
        for g in range(4):
            A(f"ds_read_b128 {vr(AT+16*i+4*g,4)}, v6 offset:{128*i+32*g}")
            A(f"ds_read_b128 {vr(BT+16*i+4*g,4)}, v6 offset:{512+128*i+32*g}")
        if i == 0: A("s_waitcnt lgkmcnt(4)")
    for i in range(2):
        for m in range(2):
            A(f"s_waitcnt lgkmcnt({12-8*i-4*m if 12-8*i-4*m < 9 else 8})")
            for j in range(2):
                base = ACC + 32*i + 16*j + 8*m
                sel = "op_sel:[0,1] op_sel_hi:[1,1]" if j else "op_sel_hi:[1,0]"
                for e in range(4):
                    A(f"v_pk_mul_f32 {vr(16+2*e,2)}, {vr(BT+16*i+8*m+2*e,2)}, v[12:13] {sel}")
                for e in range(4):
                    A(f"v_pk_fma_f32 {vr(base+2*e,2)}, {vr(base+2*e,2)}, {vr(AT+16*i+8*m+2*e,2)}, {vr(16+2*e,2)}")
                for e in range(4):
                    A(f"v_cvt_pk_bf16_f32 v{base+e}, v{base+2*e}, v{base+2*e+1}")
                A(f"buffer_store_dwordx4 {vr(base,4)}, v{SAD+j}, s[20:23], s{43+i} offen offset:{640*m}")
    stamp(A,4); A("s_waitcnt vmcnt(0)" if asmlib.STAMPS else ""); stamp(A,5); stamp_flush(A,0,6)
    A("K1_end:")
    A("s_endpgm")
    PIT = 1312
    A(f"""
    K1_spare:
    s_load_dwordx2 s[44:45], s[0:1], 48
    s_lshr_b32 s10, s3, 1
    s_lshl_b32 s10, s10, 2
    s_add_u32 s27, s10, s11
    v_lshlrev_b32 v1, 4, v2           ; lane*16
    s_waitcnt lgkmcnt(0)
    """)
    srd(A, 16, 44, 1536*640*2)
    srd(A, 20, 8, WS_USED)
    A(f"""
    s_mul_i32 s29, s27, {96*1280}
    s_mul_i32 s10, s24, 1280
    s_add_u32 s29, s29, s10
    s_mul_i32 s30, s24, {PIT}
    s_mov_b32 s31, 12
    s_mov_b32 exec_hi, 0xff
    K1_sp1:
    s_mov_b32 m0, s30
    s_add_u32 s30, s30, {8*PIT}
    buffer_load_dwordx4 v1, s[16:19], s29 offen lds
    buffer_load_dwordx4 v1, s[16:19], s29 offen offset:640 lds
    s_add_u32 s29, s29, {8*1280}
    s_sub_u32 s31, s31, 1
    s_cmp_lg_u32 s31, 0
    s_cbranch_scc1 K1_sp1
    s_mov_b64 exec, -1
    s_cmp_lg_u32 s27, 0
    s_cbranch_scc1 K1_sp2
    v_lshlrev_b32 v6, 3, v0
    v_mov_b32 v4, 0
    v_mov_b32 v5, 0
    s_mov_b32 s10, {FL}
    buffer_store_dwordx2 v[4:5], v6, s[20:23], s10 offen
    K1_sp2:
    v_lshrrev_b32 v5, 5, v2
    v_lshlrev_b32 v5, 4, v5
    v_bfe_u32 v6, v2, 4, 1
    v_lshl_add_u32 v5, v6, 2, v5
    v_bfe_u32 v6, v2, 2, 2
    v_add_u32 v5, v5, v6
    v_mul_u32_u24 v5, {PIT}, v5
    v_and_b32 v6, 3, v2
    v_lshl_add_u32 v5, v6, 3, v5
    s_mul_i32 s10, s24, 160
    v_add_u32 v5, s10, v5
    s_mul_i32 s29, s24, {48*5120}
    s_mul_i32 s10, s27, {3*5120}
    s_add_u32 s29, s29, s10
    s_add_u32 s29, s29, {WDP}
    s_mov_b32 s31, 3
    s_waitcnt vmcnt(0)
    s_barrier
    K1_sp3:
    """)
    for ct in range(5):
        A(f"ds_read_b64_tr_b16 {vr(8+4*ct,2)}, v5 offset:{ct*32}")
        A(f"ds_read_b64_tr_b16 {vr(8+4*ct+2,2)}, v5 offset:{ct*32+8*PIT}")
    A(f"v_add_u32 v5, {32*PIT}, v5")
    A("s_add_u32 s30, s29, 4096")
    for ct in range(5):
        A(f"s_waitcnt lgkmcnt({8-2*ct})")
        if ct < 4: A(f"buffer_store_dwordx4 {vr(8+4*ct,4)}, v1, s[20:23], s29 offen offset:{1024*ct}")
        else:      A(f"buffer_store_dwordx4 {vr(8+4*ct,4)}, v1, s[20:23], s30 offen")
    A(f"""
    s_add_u32 s29, s29, 5120
    s_sub_u32 s31, s31, 1
    s_cmp_lg_u32 s31, 0
    s_waitcnt vmcnt(0)
    s_cbranch_scc1 K1_sp3
    """)
    stamp(A,1); stamp(A,2); stamp(A,3); stamp(A,4); stamp(A,5); stamp_flush(A,2,6)
    A("s_endpgm")
    return dict(name=name, grid=256, block=512, lds=TAB+4096+20480, nvgpr=200)
```

```python
import math
KV = 0x000000
QF = 0x500000
GRP = 0x780000
G_O = 0x0
G_G = 0x0
G_T = 0x50000
G_H = 0xC0000
G_ST = 0x110000
GRP_SZ = 0x114000
FL = GRP + 8*GRP_SZ
WDP = FL + 0x1000
WOP = WDP + 1536*640*2
WGP = WOP + 640*640*2
WS_USED = WGP + 640*1536*4
EPS = 1e-5
QSCALE = (20 ** -0.5) * math.log2(math.e)
```

```python
import sys
import asmlib
asmlib.STAMPS = 'stamps' in sys.argv
from asmlib import *
import k1, fused
REF = open("sequential_preLN__softmax_full_mha__geglu_ffn__prompt.s.ref").read()
head = "".join(l + "\n" for l in REF.split("\n") if l.startswith(";") and "launch" not in l and "grid=ceil" not in l)
A = Asm()
A('.amdgcn_target "amdgcn-amd-amdhsa--gfx950"')
A(".text")
ks = [k1.gen_k1(A), fused.gen_fused(A)]
out = head
for k in ks:
    out += f"; @launch kernel={k['name']} grid=({k['grid']},1,1) block=({k['block']},1,1) lds={k['lds']}\n"
out += A.text()
out += '.section .rodata,"a"\n'
for k in ks:
    out += kernel_desc(k["name"], k["nvgpr"])
path = sys.argv[1] if len(sys.argv) > 1 else "sequential_preLN__softmax_full_mha__geglu_ffn__prompt.s"
open(path, "w").write(out)
print("wrote", path, len(out))
```

```python
class Asm:
    def __init__(self):
        self.lines = []
        self.lab = 0
    def __call__(self, s):
        for ln in s.strip("\n").split("\n"):
            ln = ln.rstrip()
            if not ln.strip():
                continue
            t = ln.strip()
            if t.endswith(":") or t.startswith("."):
                self.lines.append(t)
            else:
                self.lines.append("    " + t)
    def label(self, base="L"):
        self.lab += 1
        return f"{base}_{self.lab}"
    def text(self):
        return "\n".join(self.lines) + "\n"

def vr(a, n=1):
    return f"v{a}" if n == 1 else f"v[{a}:{a+n-1}]"
def sr(a, n=1):
    return f"s{a}" if n == 1 else f"s[{a}:{a+n-1}]"

def srd(A, d, ptr, nbytes, add=0):
    if add:
        A(f"s_add_u32 s{d}, s{ptr}, {add:#x}")
        A(f"s_addc_u32 s{d+1}, s{ptr+1}, 0")
    else:
        A(f"s_mov_b32 s{d}, s{ptr}")
        A(f"s_mov_b32 s{d+1}, s{ptr+1}")
    A(f"s_mov_b32 s{d+2}, {nbytes:#x}")
    A(f"s_mov_b32 s{d+3}, 0x20000")

def kernel_begin(A, name):
    A(f".globl {name}")
    A(".p2align 8")
    A(f".type {name},@function")
    A(f"{name}:")

def kernel_desc(name, nvgpr, nsgpr=102, accum=None):
    if accum is None:
        accum = (nvgpr + 3) // 4 * 4
    return f""".p2align 6
.amdhsa_kernel {name}
  .amdhsa_next_free_vgpr {nvgpr}
  .amdhsa_next_free_sgpr {nsgpr}
  .amdhsa_accum_offset {accum}
  .amdhsa_group_segment_fixed_size 0
  .amdhsa_kernarg_size 80
  .amdhsa_user_sgpr_count 2
  .amdhsa_user_sgpr_kernarg_segment_ptr 1
  .amdhsa_system_sgpr_workgroup_id_x 1
  .amdhsa_float_denorm_mode_32 3
  .amdhsa_float_denorm_mode_16_64 3
.end_amdhsa_kernel
"""
import struct
def f32(x):
    return "0x%08x" % struct.unpack("<I", struct.pack("<f", x))[0]

import os
RT = 'rt' in os.environ.get('OPT','').split(',')
STAMPS = False
STAMP_BASE = 0x2000000
def stamp(A, i):
    if STAMPS:
        A(f"{'s_memrealtime' if RT else 's_memtime'} s[{70+2*i}:{71+2*i}]")
def stamp_rt(A, i):
    if STAMPS:
        A(f"s_memrealtime s[{94+2*i}:{95+2*i}]")
def stamp_flush(A, kidx, n, wave="s24", wsptr=8):
    if not STAMPS: return
    stamp_rt(A, 1)
    if 'dbg' in os.environ.get('OPT','').split(','):
        lab = A.label("DBG")
        sel = {0: [0, 2, 3, 5], 1: list(range(12)), 2: []}[kidx]
        base = {0: 0, 1: 4, 2: 0}[kidx]
        A(f"""
        s_load_dwordx2 s[60:61], s[0:1], 64
        s_waitcnt lgkmcnt(0)
        s_mov_b64 exec, -1
        s_cmp_lg_u32 s2, 0
        s_cbranch_scc1 {lab}
        s_cmp_lg_u32 {wave}, {0 if kidx == 0 else 7}
        s_cbranch_scc1 {lab}
        s_sub_u32 s60, s60, {512*kidx if kidx < 2 else 0}
        s_subb_u32 s61, s61, 0
        s_mov_b32 s62, 256
        s_mov_b32 s63, 0x20000
        v_mov_b32 v1, 0
        """)
        for j, i in enumerate(sel):
            A(f"v_mov_b32 v0, s{70+2*i}")
            A(f"buffer_store_dword v0, v1, s[60:63], 0 offen offset:{4*(base+j)}")
        A(f"{lab}:")
        return
    A(f"""
    s_waitcnt lgkmcnt(0)
    s_mov_b64 exec, -1
    s_mov_b32 s60, s{wsptr}
    s_mov_b32 s61, s{wsptr+1}
    s_mov_b32 s62, 0x4000000
    s_mov_b32 s63, 0x20000
    s_add_u32 s64, s2, {kidx*256}
    s_lshl_b32 s64, s64, 3
    s_add_u32 s64, s64, {wave}
    s_lshl_b32 s64, s64, 6
    s_add_u32 s64, s64, {STAMP_BASE}
    v_mov_b32 v1, 0
    """)
    for i in range(n):
        A(f"v_mov_b32 v0, s{70+2*i}")
        A(f"buffer_store_dword v0, v1, s[60:63], s64 offen offset:{4*i}")
    for i in range(2):
        A(f"v_mov_b32 v0, s{94+2*i}")
        A(f"buffer_store_dword v0, v1, s[60:63], s64 offen offset:{56+4*i}")
```

```python
class Asm:
    def __init__(self):
        self.lines = []
        self.lab = 0
    def __call__(self, s):
        for ln in s.strip("\n").split("\n"):
            ln = ln.rstrip()
            if not ln.strip():
                continue
            t = ln.strip()
            if t.endswith(":") or t.startswith("."):
                self.lines.append(t)
            else:
                self.lines.append("    " + t)
    def label(self, base="L"):
        self.lab += 1
        return f"{base}_{self.lab}"
    def text(self):
        return "\n".join(self.lines) + "\n"

def vr(a, n=1):
    return f"v{a}" if n == 1 else f"v[{a}:{a+n-1}]"
def sr(a, n=1):
    return f"s{a}" if n == 1 else f"s[{a}:{a+n-1}]"

def srd(A, d, ptr, nbytes, add=0):
    if add:
        A(f"s_add_u32 s{d}, s{ptr}, {add:#x}")
        A(f"s_addc_u32 s{d+1}, s{ptr+1}, 0")
    else:
        A(f"s_mov_b32 s{d}, s{ptr}")
        A(f"s_mov_b32 s{d+1}, s{ptr+1}")
    A(f"s_mov_b32 s{d+2}, {nbytes:#x}")
    A(f"s_mov_b32 s{d+3}, 0x20000")

def kernel_begin(A, name):
    A(f".globl {name}")
    A(".p2align 8")
    A(f".type {name},@function")
    A(f"{name}:")

def kernel_desc(name, nvgpr, nsgpr=102, accum=None):
    if accum is None:
        accum = (nvgpr + 3) // 4 * 4
    return f""".p2align 6
.amdhsa_kernel {name}
  .amdhsa_next_free_vgpr {nvgpr}
  .amdhsa_next_free_sgpr {nsgpr}
  .amdhsa_accum_offset {accum}
  .amdhsa_group_segment_fixed_size 0
  .amdhsa_kernarg_size 80
  .amdhsa_user_sgpr_count 2
  .amdhsa_user_sgpr_kernarg_segment_ptr 1
  .amdhsa_system_sgpr_workgroup_id_x 1
  .amdhsa_float_denorm_mode_32 3
  .amdhsa_float_denorm_mode_16_64 3
.end_amdhsa_kernel
"""
import struct
def f32(x):
    return "0x%08x" % struct.unpack("<I", struct.pack("<f", x))[0]

import os
RT = 'rt' in os.environ.get('OPT','').split(',')
STAMPS = False
STAMP_BASE = 0x2000000
def stamp(A, i):
    if STAMPS:
        A(f"{'s_memrealtime' if RT else 's_memtime'} s[{70+2*i}:{71+2*i}]")
def stamp_rt(A, i):
    if STAMPS:
        A(f"s_memrealtime s[{94+2*i}:{95+2*i}]")
def stamp_flush(A, kidx, n, wave="s24", wsptr=8):
    if not STAMPS: return
    stamp_rt(A, 1)
    if 'dbg' in os.environ.get('OPT','').split(',') and kidx == 1:
        lab = A.label("DBG")
        A(f"""
        s_load_dwordx2 s[60:61], s[0:1], 64
        s_waitcnt lgkmcnt(0)
        s_mov_b64 exec, -1
        s_cmp_lg_u32 s2, 0
        s_cbranch_scc1 {lab}
        s_cmp_lg_u32 {wave}, 7
        s_cbranch_scc1 {lab}
        s_mov_b32 s62, 256
        s_mov_b32 s63, 0x20000
        v_mov_b32 v1, 0
        s_mov_b32 s22, 0x4000000
        s_mov_b32 s10, {STAMP_BASE}
        buffer_load_dwordx4 v[8:11], v1, s[20:23], s10 offen
        buffer_load_dwordx4 v[12:15], v1, s[20:23], s10 offen offset:16
        s_waitcnt vmcnt(0)
        v_readfirstlane_b32 s11, v8
        """)
        for i in range(12):
            A(f"s_sub_u32 s10, s{70+2*i}, s11")
            A(f"v_mov_b32 v0, s10")
            A(f"buffer_store_dword v0, v1, s[60:63], 0 offen offset:{4*i}")
        for j, r in enumerate((10, 11, 12, 13)):
            A(f"v_subrev_u32 v0, s11, v{r}")
            A(f"buffer_store_dword v0, v1, s[60:63], 0 offen offset:{48+4*j}")
        A(f"{lab}:")
        return
    A(f"""
    s_waitcnt lgkmcnt(0)
    s_mov_b64 exec, -1
    s_mov_b32 s60, s{wsptr}
    s_mov_b32 s61, s{wsptr+1}
    s_mov_b32 s62, 0x4000000
    s_mov_b32 s63, 0x20000
    s_add_u32 s64, s2, {kidx*256}
    s_lshl_b32 s64, s64, 3
    s_add_u32 s64, s64, {wave}
    s_lshl_b32 s64, s64, 6
    s_add_u32 s64, s64, {STAMP_BASE}
    v_mov_b32 v1, 0
    """)
    for i in range(n):
        A(f"v_mov_b32 v0, s{70+2*i}")
        A(f"buffer_store_dword v0, v1, s[60:63], s64 offen offset:{4*i}")
    for i in range(2):
        A(f"v_mov_b32 v0, s{94+2*i}")
        A(f"buffer_store_dword v0, v1, s[60:63], s64 offen offset:{56+4*i}")
```

```python
import math
KV = 0x000000
QF = 0x500000
GRP = 0x780000
G_O = 0x0
G_G = 0x0
G_T = 0x50000
G_H = 0xC0000
G_ST = 0x110000
GRP_SZ = 0x114000
FL = GRP + 8*GRP_SZ
FA = FL + 0x8000
FP = FA + 0x8000
FO = FP + 0x8000
RS = FO + 0x8000
CSQ = RS + 0x8000
WDP = CSQ + 0x8000
WOP = WDP + 1536*640*2
WGP = WOP + 640*640*2
WS_USED = WGP + 640*1536*4
EPS = 1e-5
QSCALE = (20 ** -0.5) * math.log2(math.e)
```

```python
from asmlib import *
import asmlib
from layout import *
import math, os
OPT = set(os.environ.get('OPT','').split(','))

class VM:
    def __init__(self): self.q = []
    def op(self, tag): self.q.append(tag)
    def need(self, tag):
        idx = max(i for i, t in enumerate(self.q) if t == tag)
        n = len(self.q) - 1 - idx
        assert n <= 63
        return n
    def clear(self): self.q = []
    def mark(self, tag): self.m = getattr(self, 'm', {}); self.m[tag] = len(self.q)
    def since(self, tag): return len(self.q) - self.m[tag]

VO80, TCH, XT, JUNK, L4, L16 = 112, 121, 122, 123, 124, 125
PK = 128
XL = 102400
RED = 122880
CSP = 143360
S_W, S_G, S_IDX = 24, 25, 26
S_HD, S_QB = 38, 39
S_TAG = 98
S_GB, S_FL, S_MODE, S_XCC = 52, 53, 54, 55
S_RT4, S_CBK, S_RT, S_KH, S_RT16 = 56, 57, 58, 59, 66

def poll(A, name, voff, soff, off=0, acquire=True):
    A(f"""
    s_mov_b32 s11, 0x40000
    {name}_poll:
    buffer_load_dwordx2 v[6:7], v{voff}, s[20:23], {soff} offen offset:{off} sc1
    s_sub_u32 s11, s11, 1
    s_cmp_eq_u32 s11, 0
    s_cbranch_scc1 {name}_got
    s_waitcnt vmcnt(0)
    v_cmp_ne_u64 vcc, s[{S_TAG}:{S_TAG+1}], v[6:7]
    s_cbranch_vccnz {name}_poll
    {name}_got:
    """)
    if acquire:
        A(f"""
        s_cmp_eq_u32 s{S_MODE}, 0
        s_cbranch_scc1 {name}_p1
        buffer_inv sc1
        s_waitcnt vmcnt(0)
        {name}_p1:
        """)

def signal(A, name, soff):
    A(f"""
    v_mov_b32 v6, s{S_TAG}
    v_mov_b32 v7, s{S_TAG+1}
    v_mov_b32 v5, 0
    s_waitcnt vmcnt(0)
    s_mov_b64 exec, 1
    s_cmp_lg_u32 s{S_MODE}, 0
    s_cbranch_scc1 {name}_slow
    buffer_store_dwordx2 v[6:7], v5, s[20:23], {soff} offen
    s_branch {name}_p0
    {name}_slow:
    buffer_wbl2 sc1
    s_waitcnt vmcnt(0)
    buffer_store_dwordx2 v[6:7], v5, s[20:23], {soff} offen sc0 sc1
    {name}_p0:
    s_mov_b64 exec, -1
    """)

NBR = int(os.environ.get('NBR', 10))
BIF = int(os.environ.get('BIF', 2))
def gen_main(A, name):
    import phasea
    kernel_begin(A, name)
    if 'sta' in OPT:
        phasea.stamp = lambda A, i: asmlib.stamp(A, i+1 if i else 0)
        stamp = lambda A, i: asmlib.stamp(A, {2: 8, 3: 9, 5: 10, 11: 11}[i]) if i in (2, 3, 5, 11) else None
        sta = lambda i: asmlib.stamp(A, i)
    else:
        phasea.stamp = lambda A, i: asmlib.stamp(A, 0) if i == 0 else None
        stamp = asmlib.stamp
        sta = lambda i: None
    phasea.gen_phase_a(A)
    vm = VM()
    Q0, Q1, K0, K1, V0, V1, P0, P1 = 8, 12, 16, 20, 24, 28, 32, 36
    AK0, AK1, AV = 40, 41, 42
    NEGM, SA, SB, O = 48, 64, 80, 96
    A("F_main:")
    sta(6)
    A(f"""
    s_load_dwordx2 s[6:7], s[0:1], 56
    s_mov_b32 s8, s62
    s_mov_b32 s9, s63
    s_and_b32 s{S_G}, s2, 7
    s_lshr_b32 s{S_IDX}, s2, 3
    s_and_b32 s10, s{S_IDX}, 3
    s_lshl_b32 s{S_HD}, s{S_G}, 2
    s_add_u32 s{S_HD}, s{S_HD}, s10
    s_lshr_b32 s{S_QB}, s{S_IDX}, 2
    s_lshr_b32 s64, s{S_HD}, 3
    s_lshl_b32 s64, s64, 11
    s_add_u32 s64, s64, {FA}
    v_and_b32 v6, 15, v2
    v_lshlrev_b32 v14, 7, v6
    v_bfe_u32 v7, v2, 4, 1
    v_lshl_add_u32 v14, v7, 13, v14
    v_add_u32 v14, 8192, v14
    v_and_b32 v7, 1, v2
    v_lshlrev_b32 v15, 7, v7
    v_bfe_u32 v7, v2, 1, 2
    v_min_u32 v7, 2, v7
    v_lshl_add_u32 v15, v7, 13, v15
    s_lshl_b32 s11, s{S_QB}, 8
    v_add_u32 v15, s11, v15
    s_cmp_lg_u32 s{S_W}, 5
    s_cbranch_scc1 F_m1
    """)
    poll(A, "F_s0", 15, "s64", 0, acquire=False)
    A(f"""
    F_m1:
    v_lshlrev_b32 v{L16}, 4, v2
    v_lshlrev_b32 v{AK1}, 3, v3
    v_add_u32 v{AK1}, 1024, v{AK1}
    s_lshl_b32 s10, s{S_HD}, 3
    s_add_u32 s10, s10, s{S_QB}
    s_lshl_b32 s10, s10, 3
    s_add_u32 s10, s10, s{S_W}
    s_mul_i32 s28, s10, 1280
    s_add_u32 s28, s28, {QF}          ; Q soffset
    s_mul_i32 s29, s{S_HD}, 163840
    s_lshl_b32 s30, s{S_W}, 10
    s_mul_i32 s34, s{S_QB}, 20480
    s_add_u32 s34, s34, s30
    s_add_u32 s34, s34, s29
    s_add_u32 s37, s29, 163840
    s_waitcnt lgkmcnt(0)
    s_barrier
    """)
    sta(7)
    A(f"""
    buffer_load_dwordx4 {vr(Q0,4)}, v{L16}, s[20:23], s28 offen sc1
    buffer_load_dwordx2 {vr(Q1,2)}, v{AK1}, s[20:23], s28 offen sc1
    """)
    vm.op("q"); vm.op("q")
    kvr = [0]
    def kv_round():
        A(f"""
        s_mov_b32 m0, s30
        s_add_u32 s30, s30, 8192
        buffer_load_dwordx4 v{L16}, s[20:23], s34 offen sc1 lds
        s_add_u32 s34, s34, 8192
        s_sub_u32 s10, s34, 163840
        s_cmp_ge_u32 s34, s37
        s_cselect_b32 s34, s10, s34
        """)
        vm.op(f"kv{kvr[0]}"); kvr[0] += 1
    for _ in range(2): kv_round()
    srd(A, 12, 4, 2048*640*2)
    srd(A, 40, 6, 2048*640*2)
    A(f"""
    s_getreg_b32 s{S_XCC}, hwreg(HW_REG_XCC_ID)
    v_lshlrev_b32 v{AK0}, 4, v2
    s_mul_i32 s{S_GB}, s{S_G}, {GRP_SZ}
    s_add_u32 s{S_GB}, s{S_GB}, {GRP}
    s_lshl_b32 s{S_FL}, s{S_G}, 11
    s_add_u32 s{S_FL}, s{S_FL}, {FL}
    s_and_b32 s{S_XCC}, s{S_XCC}, 15
    s_add_u32 s{S_XCC}, s{S_XCC}, 1
    v_mul_u32_u24 v5, 20, v4
    v_add_u32 v5, v5, v3
    v_lshlrev_b32 v5, 4, v5
    v_add_u32 v{AV}, 1280, v5
    s_mov_b32 s32, 0x000fffff
    s_mov_b32 s33, 0x000fffff
    v_lshlrev_b32 v{L4}, 3, v3
    v_lshlrev_b32 v{TCH}, 7, v2
    s_lshr_b32 s{S_RT4}, s{S_IDX}, 3
    s_and_b32 s{S_CBK}, s{S_IDX}, 7
    s_and_b32 s{S_RT}, s{S_W}, 3
    s_lshr_b32 s{S_KH}, s{S_W}, 2
    s_lshl_b32 s10, s{S_RT4}, 2
    s_add_u32 s{S_RT16}, s10, s{S_RT}
    """)
    for i in range(2):
        A(f"""
        v_add_u32 v5, {512*i}, v0
        v_mul_u32_u24 v6, 6554, v5
        v_lshrrev_b32 v6, 16, v6
        v_mul_u32_u24 v7, 10, v6
        v_sub_u32 v5, v5, v7
        v_mul_u32_u24 v6, 1280, v6
        v_lshl_add_u32 v{VO80+i}, v5, 4, v6
        """)
    A(f"""
    s_mul_i32 s65, s{S_CBK}, {48*5120}
    s_add_u32 s65, s65, {WDP}
    s_mul_i32 s35, s{S_IDX}, 122880
    s_add_u32 s35, s35, {WGP}
    s_cmp_eq_u32 s{S_KH}, 0
    s_cselect_b32 s35, s35, s65
    s_mul_i32 s10, s{S_W}, 30720
    s_add_u32 s35, s35, s10
    s_lshl_b32 s67, s{S_W}, 10         ; W_C lds
    s_mul_i32 s68, s{S_CBK}, 102400
    s_add_u32 s68, s68, s67
    s_add_u32 s68, s68, {WOP}
    s_lshl_b32 s11, s{S_G}, 2
    s_add_u32 s11, s11, s{S_RT4}
    s_mul_i32 s69, s11, {64*1280}
    s_mul_i32 s10, s{S_CBK}, 160
    s_add_u32 s69, s69, s10
    s_mul_i32 s36, s{S_IDX}, {(GRP_SZ-G_T)//32}
    s_mul_i32 s10, s{S_W}, {25*128}
    s_add_u32 s36, s36, s10
    s_add_u32 s36, s36, {G_T}
    s_add_u32 s36, s36, s{S_GB}
    s_mov_b32 s50, {FP}
    s_mov_b32 s51, {FP+192*128}
    v_and_b32 v5, 27, v2
    v_cmp_eq_u32 vcc, 24, v5
    v_mov_b32 v6, 0x3f803f80
    s_nop 1
    """)
    for r in range(8): A(f"v_cndmask_b32 v{V0+r}, 0, v6, vcc")
    for r in range(16): A(f"v_mov_b32 v{O+r}, 0")
    for r in range(4): A(f"v_mov_b32 v{P1+r}, 0")
    A(f"""
    s_cmp_lg_u32 s{S_W}, 5
    s_cbranch_scc1 F_m2
    """)
    poll(A, "F_s0b", 14, "s64", 0, acquire=False)
    A(f"""
    F_m2:
    v_cmp_gt_u32 vcc, 32, v2
    s_waitcnt vmcnt({vm.need('kv1')})
    v_cndmask_b32 v{Q1}, 0, v{Q1}, vcc
    v_cndmask_b32 v{Q1+1}, 0, v{Q1+1}, vcc
    s_barrier
    ds_read_b128 {vr(K0,4)}, v{AK0}
    ds_read_b64 {vr(K1,2)}, v{AK1}
    """)
    kv_round()
    A(f"""
    s_waitcnt lgkmcnt(0)
    v_mfma_f32_32x32x16_bf16 {vr(SA,16)}, {vr(K0,4)}, {vr(Q0,4)}, 0
    v_mfma_f32_32x32x8_bf16 {vr(SA,16)}, {vr(K1,2)}, {vr(Q1,2)}, {vr(SA,16)}
    ds_read_b128 {vr(K0,4)}, v{AK0} offset:2560
    ds_read_b64 {vr(K1,2)}, v{AK1} offset:2560
    """)
    kv_round()
    A(f"""
    s_nop 2
    v_max3_f32 v5, v{SA}, v{SA+1}, v{SA+2}
    v_max3_f32 v6, v{SA+3}, v{SA+4}, v{SA+5}
    v_max3_f32 v5, v5, v{SA+6}, v{SA+7}
    v_max3_f32 v6, v6, v{SA+8}, v{SA+9}
    v_max3_f32 v5, v5, v{SA+10}, v{SA+11}
    v_max3_f32 v6, v6, v{SA+12}, v{SA+13}
    v_max3_f32 v5, v5, v{SA+14}, v{SA+15}
    v_max_f32 v5, v5, v6
    v_mov_b32 v6, v5
    s_nop 1
    v_permlane32_swap_b32 v5, v6
    s_nop 1
    v_max_f32 v5, v5, v6              ; max of the first key tile for query t
    """)
    for r in range(16): A(f"v_sub_f32 v{NEGM+r}, 0, v5")
    for r in range(16): A(f"v_sub_f32 v{SA+r}, v{SA+r}, v5")
    stamp(A, 2)
    def pk_load(j):
        def f():
            A(f"buffer_load_dwordx4 {vr(PK+4*j,4)}, v{L16}, s[20:23], s35 offen offset:{(j%4)*1024} sc1")
            if j % 4 == 3: A("s_add_u32 s35, s35, 4096")
            vm.op("pk")
        return f
    def wc_piece(j):
        def f():
            lab = None
            if j == 12:
                lab = A.label("F_wc")
                A(f"s_cmp_ge_u32 s{S_W}, 4")
                A(f"s_cbranch_scc1 {lab}")
            A(f"""
            s_mov_b32 m0, s67
            s_add_u32 s67, s67, 8192
            buffer_load_dwordx4 v{L16}, s[20:23], s68 offen sc1 lds
            s_add_u32 s68, s68, 8192
            """)
            if lab: A(f"{lab}:")
            else: vm.op("wc")
        return f
    def x_piece(i):
        def f():
            lab = None
            if i == 1:
                lab = A.label("F_xp")
                A(f"s_cmp_ge_u32 s{S_W}, 2")
                A(f"s_cbranch_scc1 {lab}")
            A(f"""
            s_lshl_b32 s10, s{S_W}, 10
            s_add_u32 m0, s10, {XL+8192*i}
            s_nop 0
            buffer_load_dwordx4 v{VO80+i}, s[12:15], s69 offen lds
            """)
            if lab: A(f"{lab}:")
            else: vm.op("x")
        return f
    def touch():
        A(f"""
        s_mov_b64 exec, 0x1ffffff
        buffer_load_dword v{JUNK}, v{TCH}, s[20:23], s36 offen sc1
        s_mov_b64 exec, -1
        """)
        vm.op("x")
    def fp_store():
        A(f"""
        s_cmp_lg_u32 s{S_W}, 0
        s_cbranch_scc1 F_nofp
        s_lshl_b32 s10, s2, 7
        v_mov_b32 v116, s{S_TAG}
        v_mov_b32 v117, s{S_TAG+1}
        v_mov_b32 v118, s{S_XCC}
        v_mov_b32 v119, s10
        s_mov_b64 exec, 1
        buffer_store_dwordx4 v[116:119], v119, s[20:23], s50 offen sc1
        s_mov_b64 exec, -1
        F_nofp:
        """)
    def fp_load():
        A(f"buffer_load_dwordx2 v[114:115], v{TCH}, s[20:23], s51 offen sc1")
        vm.op("fp")
    def fp_check():
        A(f"""
        s_mov_b32 s11, 0x40000
        s_waitcnt vmcnt({vm.need('fp')})
        F_fpc:
        v_cmp_ne_u64 vcc, s[{S_TAG}:{S_TAG+1}], v[114:115]
        s_cbranch_vccz F_fpo
        buffer_load_dwordx2 v[114:115], v{TCH}, s[20:23], s51 offen sc1
        s_sub_u32 s11, s11, 1
        s_waitcnt vmcnt(0)
        s_cmp_lg_u32 s11, 0
        s_cbranch_scc1 F_fpc
        F_fpo:
        """)
    def xcc_load():
        A(f"""
        v_lshlrev_b32 v{XT}, 10, v3
        s_lshl_b32 s51, s{S_G}, 7
        s_add_u32 s51, s51, {FP}
        buffer_load_dwordx4 v[116:119], v{XT}, s[20:23], s51 offen sc1
        """)
        vm.op("xcc")
        A(f"v_and_b32 v5, 0x780, v{TCH}")
        A(f"buffer_load_dword v{JUNK}, v5, s[20:23], s{S_FL} offen sc1")
        vm.op("x")
    def we_touch():
        A(f"""
        s_lshl_b32 s10, s{S_RT4}, 3
        s_add_u32 s10, s10, s{S_W}
        s_mul_i32 s10, s10, 3840
        s_add_u32 s10, s10, s65
        s_mov_b64 exec, 0x3fffffff
        buffer_load_dword v{JUNK}, v{TCH}, s[20:23], s10 offen sc1
        s_mov_b64 exec, -1
        """)
        vm.op("x")
    def code_touch():
        lab = A.label("F_ct")
        A(f"""
        s_cmp_lg_u32 s{S_W}, 7
        s_cbranch_scc1 {lab}
        s_getpc_b64 s[10:11]
        F_ctpc:
        s_and_b32 s28, s{S_IDX}, 3
        s_lshl_b32 s28, s28, 13
        v_add_u32 v5, s28, v{TCH}
        v_min_u32 v5, F_kend-F_ctpc-4, v5
        global_load_dword v{JUNK}, v5, s[10:11]
        {lab}:
        """)
    jobs, jobs2 = {}, {}
    jobs2[0] = kv_round
    jobs[0] = fp_store
    jobs[5] = fp_load
    jobs[9] = fp_check
    for r in range(5, 20): jobs[2*(r-4)] = kv_round
    n = 10
    for j in range(30):
        jobs2[n] = pk_load(j); n += 2 if j < 15 else 1
    assert n <= 56, n
    for j in range(13): jobs[44+j] = wc_piece(j)
    jobs[33] = we_touch
    jobs[35] = xcc_load
    jobs[57] = x_piece(0)
    jobs[58] = x_piece(1)
    jobs2[56] = touch
    bars = {4: "kv4", 12: "kv8", 24: "kv14", 44: "kv19"}
    baseK = 0; baseV = 0
    for n in range(64):
        S, Sn = (SA, SB) if n % 2 == 0 else (SB, SA)
        def ex(a, b):
            for r in range(a, b): A(f"v_exp_f32 v{S+r}, v{S+r}")
        def cv(P, a):
            for e in range(4): A(f"v_cvt_pk_bf16_f32 v{P+e}, v{S+a+2*e}, v{S+a+2*e+1}")
        if n in bars:
            A(f"s_waitcnt vmcnt({vm.since('rs') if bars[n] == 'rs' else vm.need(bars[n])})")
            A("s_barrier")
        A(f"s_setprio {3-(n%4)}")
        if 'attnst' in OPT and n % 8 == 0 and n > 0: asmlib.stamp(A, 3 + n//8)
        if 2560*n + 640 - baseV > 65000:
            A(f"v_add_u32 v{AV}, {2560*n-baseV}, v{AV}"); baseV = 2560*n
        if 2560*(n+2) - baseK > 65000:
            A(f"v_add_u32 v{AK0}, {2560*(n+2)-baseK}, v{AK0}")
            A(f"v_add_u32 v{AK1}, {2560*(n+2)-baseK}, v{AK1}"); baseK = 2560*(n+2)
        ex(0, 2)
        A(f"v_mfma_f32_32x32x16_bf16 {vr(O,16)}, {vr(V1,4)}, {vr(P1,4)}, {vr(O,16)}")
        A("s_mov_b64 exec, s[32:33]")
        A(f"ds_read_b128 {vr(V0,4)}, v{AV} offset:{2560*n-baseV}")
        A(f"ds_read_b128 {vr(V1,4)}, v{AV} offset:{2560*n-baseV+640}")
        A("s_mov_b64 exec, -1")
        if n in jobs2: jobs2[n]()
        ex(2, 7)
        if n < 63:
            A("s_waitcnt lgkmcnt(2)")
            A(f"v_mfma_f32_32x32x16_bf16 {vr(Sn,16)}, {vr(K0,4)}, {vr(Q0,4)}, {vr(NEGM,16)}")
        ex(7, 8)
        cv(P0, 0)
        ex(8, 10)
        if n < 63:
            A(f"v_mfma_f32_32x32x8_bf16 {vr(Sn,16)}, {vr(K1,2)}, {vr(Q1,2)}, {vr(Sn,16)}")
        if n < 62:
            A(f"ds_read_b128 {vr(K0,4)}, v{AK0} offset:{2560*(n+2)-baseK}")
            A(f"ds_read_b64 {vr(K1,2)}, v{AK1} offset:{2560*(n+2)-baseK}")
        if n in jobs: jobs[n]()
        ex(10, 15)
        A(f"s_waitcnt lgkmcnt({2 if n < 62 else 0})")
        A(f"v_mfma_f32_32x32x16_bf16 {vr(O,16)}, {vr(V0,4)}, {vr(P0,4)}, {vr(O,16)}")
        ex(15, 16)
        cv(P1, 8)
    A("s_setprio 0")
    A("s_nop 0")
    A(f"v_mfma_f32_32x32x16_bf16 {vr(O,16)}, {vr(V1,4)}, {vr(P1,4)}, {vr(O,16)}")
    stamp(A, 3)
    if 'attnst' in OPT:
        def stamp(A, i): pass
    est = (lambda i: asmlib.stamp(A, i)) if 'est' in OPT else (lambda i: None)
    if 'est' in OPT:
        def stamp(A, i):
            if i >= 8: asmlib.stamp(A, i)
    A(f"""
    v_lshrrev_b32 v5, 4, v3
    v_mul_u32_u24 v5, {20*1024}, v5
    v_and_b32 v6, 15, v3
    v_lshl_add_u32 v17, v6, 4, v5     ; (t>>4)*20480 + (t&15)*16
    v_lshl_add_u32 v16, v4, 8, v17    ; + h*256
    s_mul_i32 s44, s{S_QB}, {GRP_SZ}
    s_mul_i32 s10, s{S_W}, 40960
    s_add_u32 s44, s44, s10
    s_add_u32 s44, s44, {GRP+G_O}
    s_lshr_b32 s10, s{S_HD}, 1
    s_lshl_b32 s10, s10, 8
    s_and_b32 s11, s{S_HD}, 1
    s_lshl_b32 s11, s11, 3
    s_add_u32 s45, s10, s11
    s_add_u32 s45, s45, s44
    s_add_u32 s45, s45, 16384
    s_lshl_b32 s10, s{S_HD}, 9
    s_add_u32 s44, s44, s10
    ; run-time check of the stand-in max: row sum (>= 1) must stay far below overflow and the outputs finite
    v_add_f32 v6, abs(v{O}), abs(v{O+1})
    v_add_f32 v7, abs(v{O+2}), abs(v{O+3})
    v_add_f32 v6, v6, abs(v{O+4})
    v_add_f32 v7, v7, abs(v{O+5})
    v_add_f32 v6, v6, abs(v{O+6})
    v_add_f32 v7, v7, abs(v{O+7})
    v_add_f32 v6, v6, abs(v{O+8})
    v_add_f32 v7, v7, abs(v{O+9})
    v_add_f32 v6, v6, abs(v{O+10})
    v_add_f32 v7, v7, abs(v{O+11})
    v_add_f32 v6, v6, v7
    v_cmp_ngt_f32 vcc, {f32(2.0**64)}, v{O+12}
    s_mov_b64 s[10:11], vcc
    v_cmp_ngt_f32 vcc, {f32(2.0**126)}, v6
    s_or_b64 s[10:11], s[10:11], vcc
    s_cbranch_scc1 F_slow
    F_out:
    v_rcp_f32 v6, v{O+12}
    s_nop 0
    """)
    for r in range(12): A(f"v_mul_f32 v{O+r}, v{O+r}, v6")
    for e in range(6): A(f"v_cvt_pk_bf16_f32 v{O+e}, v{O+2*e}, v{O+2*e+1}")
    A(f"buffer_store_dwordx4 {vr(O,4)}, v16, s[20:23], s44 offen sc1")
    A("s_mov_b32 exec_hi, 0")
    A(f"buffer_store_dwordx2 {vr(O+4,2)}, v17, s[20:23], s45 offen sc1")
    A("s_mov_b32 exec_hi, -1")
    vm.op("o"); vm.op("o")
    A(f"""
    s_mov_b32 s11, 0x40000
    s_waitcnt vmcnt({vm.need('xcc')})
    F_xc:
    v_cmp_ne_u64 vcc, s[{S_TAG}:{S_TAG+1}], v[116:117]
    s_cbranch_vccz F_xc2
    buffer_load_dwordx4 v[116:119], v{XT}, s[20:23], s51 offen sc1
    s_sub_u32 s11, s11, 1
    s_waitcnt vmcnt(0)
    s_cmp_lg_u32 s11, 0
    s_cbranch_scc1 F_xc
    F_xc2:
    v_cmp_ne_u32 vcc, s{S_XCC}, v118
    s_mov_b32 s{S_MODE}, 0
    s_cbranch_vccz F_xc3
    s_mov_b32 s{S_MODE}, 1
    F_xc3:
    """)
    ACC, WF, AF, RA, XR = 8, 28, 68, 108, 110
    A(f"""
    s_mul_i32 s10, s{S_KH}, 51200
    v_add_u32 v{RA}, s10, v{L16}
    s_mul_i32 s31, s{S_RT16}, 20480
    s_mul_i32 s11, s{S_KH}, 10240
    s_add_u32 s31, s31, s11
    s_add_u32 s31, s31, s{S_GB}
    s_mov_b32 s28, 0x3f803f80
    """)
    stamp(A, 4)
    def rdC(k):
        b = WF + 20*(k & 1)
        for ct in range(5): A(f"ds_read_b128 {vr(b+4*ct,4)}, v{RA} offset:{k*5120+ct*1024}")
    A(f"""
    s_waitcnt vmcnt(0)
    s_barrier
    s_cmp_lg_u32 s{S_W}, 4
    s_cbranch_scc1 F_s1_o
    s_lshl_b32 s10, s{S_QB}, 12
    s_lshl_b32 s11, s{S_HD}, 7
    s_add_u32 s10, s10, s11
    s_add_u32 s10, s10, {FO}
    v_mov_b32 v6, s{S_TAG}
    v_mov_b32 v7, s{S_TAG+1}
    v_mov_b32 v5, 0
    s_mov_b64 exec, 1
    buffer_store_dwordx2 v[6:7], v5, s[20:23], s10 offen sc1
    s_mov_b64 exec, -1
    F_s1_o:
    """)
    rdC(0); rdC(1)
    A(f"""
    s_cmp_eq_u32 s{S_KH}, 0
    s_cbranch_scc1 F_s1_a
    v_and_b32 v5, 15, v2
    v_mul_u32_u24 v5, 160, v5
    v_lshrrev_b32 v6, 4, v2
    v_lshl_add_u32 v5, v6, 3, v5
    s_mul_i32 s10, s{S_RT}, 2560
    s_add_u32 s10, s10, {XL}
    v_add_u32 v5, s10, v5
    """)
    for ct in range(5): A(f"ds_read_b64 {vr(XR+2*ct,2)}, v5 offset:{32*ct}")
    A("s_waitcnt lgkmcnt(0)")
    for ct in range(5):
        a = ACC + 4*ct
        A(f"""
        v_lshlrev_b32 v{a}, 16, v{XR+2*ct}
        v_and_b32 v{a+1}, 0xffff0000, v{XR+2*ct}
        v_lshlrev_b32 v{a+2}, 16, v{XR+2*ct+1}
        v_and_b32 v{a+3}, 0xffff0000, v{XR+2*ct+1}
        """)
    A(f"""
    s_cmp_lg_u32 s{S_W}, 4
    s_cbranch_scc1 F_s1_done
    """)
    A(f"""
    v_lshlrev_b32 v5, 7, v3
    s_lshl_b32 s10, s{S_G}, 12
    s_add_u32 s10, s10, {FO}
    """)
    poll(A, "F_s1", 5, "s10", 0, acquire=False)
    A(f"""
    s_branch F_s1_done
    F_s1_a:
    v_mov_b32 v8, 0
    v_mov_b32 v9, 0
    v_mov_b32 v10, 0
    s_lshl_b32 s10, s{S_W}, 2
    s_add_u32 s10, s10, {CSP}
    v_lshl_add_u32 v7, v2, 4, s10
    """)
    for k in range(10):
        for d in range(4):
            for t in range(3):
                A(f"v_dot2c_f32_bf16 v{8+t}, s28, v{PK+12*k+4*t+d}")
    A("s_nop 2")
    for t in range(3): A(f"ds_write_b32 v7, v{8+t} offset:{1024*t}")
    A("s_waitcnt lgkmcnt(0)")
    for r in range(20): A(f"v_mov_b32 v{ACC+r}, 0")
    A("F_s1_done:")
    A("s_barrier")
    stamp(A, 5)
    for ks in range(10):
        A(f"buffer_load_dwordx4 {vr(AF+4*ks,4)}, v{L16}, s[20:23], s31 offen offset:{(ks%4)*1024} sc1")
        if ks % 4 == 3: A("s_add_u32 s31, s31, 4096")
    CSO = 104
    PT = 88
    A(f"""
    s_mul_i32 s10, s{S_RT}, 5120
    s_add_u32 s10, s10, {RED}
    v_add_u32 v1, s10, v{L16}
    """)
    def stepC(k):
        b = WF + 20*(k & 1)
        for ct in range(5):
            A(f"v_mfma_f32_16x16x32_bf16 {vr(ACC+4*ct,4)}, {vr(b+4*ct,4)}, {vr(AF+4*k,4)}, {vr(ACC+4*ct,4)}")
    for k in range(8):
        A(f"s_waitcnt vmcnt({9-k}) lgkmcnt(5)")
        stepC(k)
        rdC(k+2)
    A(f"s_cmp_eq_u32 s{S_KH}, 1")
    A("s_cbranch_scc1 F_cb")
    A("s_waitcnt vmcnt(1) lgkmcnt(5)")
    stepC(8)
    A("s_waitcnt vmcnt(0) lgkmcnt(0)")
    stepC(9)
    stamp(A, 6)
    A(f"""
    s_mul_i32 s10, s{S_W}, 30720
    v_add_u32 v7, s10, v{L16}
    v_add_u32 v6, {CSP}, v{L16}
    s_nop 4
    """)
    for ct in range(5): A(f"ds_write_b128 v1, {vr(ACC+4*ct,4)} offset:{1024*ct}")
    for t in range(3): A(f"ds_read_b128 {vr(WF+4*t,4)}, v6 offset:{1024*t}")
    A("s_waitcnt lgkmcnt(0)")
    A("s_barrier")
    A("s_mov_b32 s10, 0x07060302")
    for t in range(3):
        w = WF + 4*t
        A(f"""
        v_add_f32 v{w}, v{w}, v{w+1}
        v_add_f32 v{w+2}, v{w+2}, v{w+3}
        v_add_f32 v{w}, v{w}, v{w+2}
        v_and_b32 v6, 0xffff0000, v{w}
        v_sub_f32 v6, v{w}, v6
        v_perm_b32 v{CSO+2*t}, v6, v{w}, s10
        v_perm_b32 v{CSO+2*t+1}, v6, v{w}, s10
        """)
    ACCD, WFD, AFD, STT, RAD, GST = 8, 128, 164, 228, 111, 110
    A(f"""
    v_add_u32 v{RAD}, 61440, v{L16}
    s_mul_i32 s31, s{S_W}, 81920
    s_add_u32 s31, s31, {G_H}
    s_add_u32 s31, s31, s{S_GB}
    s_add_u32 s29, s31, 40960
    v_lshlrev_b32 v5, 3, v3
    v_lshl_add_u32 v1, v4, 13, v5         ; stats voffset: h*4*2048 + t*8
    s_lshl_b32 s30, s{S_W}, 9
    s_add_u32 s30, s30, {G_ST}
    s_add_u32 s30, s30, s{S_GB}
    s_lshl_b32 s48, s{S_W}, 8
    s_add_u32 s48, s48, s{S_FL}
    s_barrier
    """)
    for j in range(30): A(f"ds_write_b128 v7, {vr(PK+4*j,4)} offset:{1024*j}")
    stamp(A, 7)
    poll(A, "F_s2", L4, "s48", 0)
    A("s_waitcnt lgkmcnt(0)")
    NR = 8
    vm.clear()
    nld = [0]
    def ldA(i):
        k = nld[0]
        A(f"buffer_load_dwordx4 {vr(AFD+8*(k%NR)+4*i,4)}, v{L16}, s[20:23], s{31 if i == 0 else 29} offen offset:{(k%4)*1024} sc1")
        vm.op(f"a{k}_{i}")
        if i == 1:
            if k % 4 == 3:
                A("s_add_u32 s31, s31, 4096"); A("s_add_u32 s29, s29, 4096")
            nld[0] += 1
    def rdD(ks, t):
        b = WFD + 12*(ks % 3)
        if ks < 20: A(f"ds_read_b128 {vr(b+4*t,4)}, v{L16} offset:{ks*3072+t*1024}")
        else:       A(f"ds_read_b128 {vr(b+4*t,4)}, v{RAD} offset:{(ks-20)*3072+t*1024}")
    for k in range(4): ldA(0); ldA(1)
    A("s_barrier")
    stamp(A, 8)
    for k in range(2):
        for t in range(3): rdD(k, t)
    c1 = -2.0*math.sqrt(2/math.pi)*math.log2(math.e)
    c3 = c1*0.044715
    stl = []
    for i in range(2):
        for c in range(4):
            so = "s30" if c < 2 else "s46"
            stl.append(f"buffer_load_dwordx2 {vr(STT+8*i+2*c,2)}, v1, s[20:23], {so} offen offset:{2048*(c&1)+256*i} sc1")
    A("s_add_u32 s46, s30, 4096")
    side = ""
    for i in range(2):
        S_ = STT + 8*i
        side += f"""
        v_add_f32 v{S_}, v{S_}, v{S_+2}
        v_add_f32 v{S_+1}, v{S_+1}, v{S_+3}
        v_add_f32 v{S_+4}, v{S_+4}, v{S_+6}
        v_add_f32 v{S_+5}, v{S_+5}, v{S_+7}
        v_add_f32 v{S_}, v{S_}, v{S_+4}
        v_add_f32 v{S_+1}, v{S_+1}, v{S_+5}
        v_mov_b32 v{S_+2}, v{S_}
        v_mov_b32 v{S_+3}, v{S_+1}
        s_nop 1
        v_permlane32_swap_b32 v{S_}, v{S_+2}
        v_permlane32_swap_b32 v{S_+1}, v{S_+3}
        s_nop 1
        v_add_f32 v{S_}, v{S_}, v{S_+2}
        v_add_f32 v{S_+1}, v{S_+1}, v{S_+3}
        v_mul_f32 v{S_}, {f32(-1/640)}, v{S_}
        v_mul_f32 v{S_+1}, {f32(1/640)}, v{S_+1}
        v_fma_f32 v{S_+1}, -v{S_}, v{S_}, v{S_+1}
        v_max_f32 v{S_+1}, 0, v{S_+1}
        v_add_f32 v{S_+2}, {f32(EPS)}, v{S_+1}
        v_rsq_f32 v{S_+1}, v{S_+2}
        s_mov_b32 s11, 0x03020302
        v_and_b32 v5, 0xffff0000, v{S_}
        v_sub_f32 v5, v{S_}, v5
        v_perm_b32 v{S_+6}, v{S_}, v{S_}, s11
        v_perm_b32 v{S_+7}, v5, v5, s11
        v_mul_f32 v{S_+4}, {f32(c1)}, v{S_+1}
        v_mul_f32 v{S_+5}, v{S_+1}, v{S_+1}
        v_mul_f32 v{S_+5}, v{S_+5}, v{S_+1}
        v_mul_f32 v{S_+5}, {f32(c3)}, v{S_+5}
        """
    side += f"""
    v_and_b32 v5, 15, v2
    v_lshlrev_b32 v5, 4, v5
    v_lshl_add_u32 v5, v4, 8, v5
    v_bfe_u32 v6, v2, 4, 1
    v_mul_u32_u24 v6, 49152, v6
    v_add_u32 v{GST}, v5, v6
    s_mul_i32 s46, s{S_W}, {2*98304}
    s_mul_i32 s11, s{S_IDX}, 1536
    s_add_u32 s46, s46, s11
    s_add_u32 s46, s46, {G_G}
    s_add_u32 s46, s46, s{S_GB}
    s_add_u32 s47, s46, 98304
    """
    side = [l.strip() for l in side.split("\n") if l.strip()]
    for ks in range(40):
        b = WFD + 12*(ks % 3)
        for i in range(2):
            a = AFD + 8*(ks % NR) + 4*i
            lg = f" lgkmcnt({3 if ks < 39 else 0})" if i == 0 else ""
            A(f"s_waitcnt vmcnt({vm.need(f'a{ks}_{i}')}){lg}")
            for t in range(3):
                acc = vr(ACCD+48*i+16*t, 16)
                A(f"v_mfma_f32_32x32x16_bf16 {acc}, {vr(b+4*t,4)}, {vr(a,4)}, {'0' if ks == 0 else acc}")
                if i == 0 and ks + 2 < 40: rdD(ks+2, t)
                if i == 1:
                    lim = min(40, ks + NR - 1 + 0)
                    if t < 2 and nld[0] < lim: ldA(t)
                    if t == 2:
                        if ks < 4 and nld[0] < lim: ldA(0); ldA(1)
                        elif 4 <= ks < 12: A(stl.pop(0)); vm.op("st")
                if ks >= 20:
                    if side: A(side.pop(0))
        if ks == 36:
            assert not side
            for i in range(2):
                for t in range(3):
                    acc = vr(ACCD+48*i+16*t, 16)
                    A(f"v_mfma_f32_32x32x8_bf16 {acc}, {vr(CSO+2*t,2)}, {vr(STT+8*i+6,2)}, {acc}")
    assert nld[0] == 40
    stamp(A, 9)
    A("s_barrier")
    A("s_nop 6")
    E = WFD
    for i in range(2):
        AA = vr(STT+8*i+4, 2); IA = vr(STT+8*i+2, 2)
        for t in range(3):
            g = ACCD + 48*i + 16*t; u = g + 8
            R4 = range(0, 8, 2)
            for e in R4: A(f"v_pk_mul_f32 {vr(E+e,2)}, {vr(g+e,2)}, {vr(g+e,2)}")
            for e in R4: A(f"v_pk_fma_f32 {vr(E+e,2)}, {vr(E+e,2)}, {AA}, {AA} op_sel:[0,1,0] op_sel_hi:[1,1,0]")
            for e in R4: A(f"v_pk_mul_f32 {vr(E+e,2)}, {vr(E+e,2)}, {vr(g+e,2)}")
            for e in range(8): A(f"v_exp_f32 v{E+e}, v{E+e}")
            for e in R4: A(f"v_pk_mul_f32 {vr(g+e,2)}, {vr(g+e,2)}, {vr(u+e,2)}")
            for e in R4: A(f"v_pk_fma_f32 {vr(E+e,2)}, {vr(E+e,2)}, {IA}, {IA} op_sel_hi:[1,0,0]")
            for e in range(8): A(f"v_rcp_f32 v{E+e}, v{E+e}")
            A("s_nop 0")
            for e in R4: A(f"v_pk_mul_f32 {vr(g+e,2)}, {vr(g+e,2)}, {vr(E+e,2)}")
            for e in range(4): A(f"v_cvt_pk_bf16_f32 v{u+e}, v{g+2*e}, v{g+2*e+1}")
            A(f"buffer_store_dwordx4 {vr(u,4)}, v{GST}, s[20:23], s{46+i} offen offset:{512*t}")
    stamp(A, 10)
    def e_setup():
        for i in range(4):
            A(f"""
            s_add_u32 s10, s{S_RT}, {i}
            s_and_b32 s10, s10, 3
            s_mul_i32 s{44+i}, s10, 5120
            s_lshl_b32 s11, s{S_RT4}, 2
            s_add_u32 s10, s10, s11
            s_mul_i32 s10, s10, 49152
            s_mul_i32 s11, s{S_W}, 6144
            s_add_u32 s10, s10, s11
            s_add_u32 s{28+i}, s10, s{S_GB}
            """)
        A(f"""
        v_and_b32 v7, 15, v2
        v_mul_u32_u24 v7, 320, v7
        v_lshrrev_b32 v5, 4, v2
        v_bfe_u32 v6, v2, 1, 2
        v_xor_b32 v5, v5, v6
        v_lshl_add_u32 v7, v5, 4, v7
        s_mul_i32 s10, s{S_W}, 20480
        v_add_u32 v7, s10, v7
        """)
        for i in range(4): A(f"v_add_u32 v{WA+i}, s{44+i}, v7")
        for rnd in range(3):
            A(f"""
            v_add_u32 v5, {512*rnd}, v0
            v_mul_u32_u24 v6, 3277, v5
            v_lshrrev_b32 v6, 16, v6
            v_mul_u32_u24 v7, 20, v6
            v_sub_u32 v5, v5, v7
            v_bfe_u32 v1, v6, 1, 2
            v_xor_b32 v1, v1, v5
            v_mul_u32_u24 v7, 320, v6
            v_lshl_add_u32 v{IL+rnd}, v1, 4, v7
            v_mul_u32_u24 v7, 1280, v6
            v_lshl_add_u32 v{OA+rnd}, v5, 3, v7
            """)
    ACE, AR, WA, IL, OA = 8, 48, 248, 252, 121
    A(f"""
    s_mul_i32 s10, s{S_W}, 10240
    s_add_u32 s10, s10, {RED}
    v_add_u32 v7, s10, v{L16}
    s_lshl_b32 s10, s{S_IDX}, 3
    s_add_u32 s48, s48, s10
    s_add_u32 s48, s48, 1024
    s_mul_i32 s10, s{S_W}, 30720
    s_add_u32 s65, s65, s10
    s_add_u32 s65, s65, 20480
    """)
    for j in range(10): A(f"ds_read_b128 {vr(PK+4*j,4)}, v7 offset:{1024*j}")
    signal(A, "F_g3", "s48")
    for j in range(20, 30 if NBR == 0 else 20):
        A(f"buffer_load_dwordx4 {vr(PK+4*j,4)}, v{L16}, s[20:23], s65 offen offset:{(j%4)*1024}")
        if j % 4 == 3: A("s_add_u32 s65, s65, 4096")
    for r in range(20): A(f"v_mov_b32 v{8+r}, 0")
    e_setup()
    A(f"""
    s_mul_i32 s10, s{S_W}, 20480
    v_add_u32 v7, s10, v{L16}
    s_waitcnt lgkmcnt(0)
    s_barrier
    """)
    for j in range(10, 20 if NBR == 0 else 30):
        A(f"ds_read_b128 {vr(PK+4*j,4)}, v7 offset:{1024*(j-10)}")
    A("s_branch F_e")
    A("F_cb:")
    A("s_barrier")
    for ct in range(5): A(f"ds_read_b128 {vr(AF+4*ct,4)}, v1 offset:{1024*ct}")
    A("s_waitcnt vmcnt(1) lgkmcnt(10)")
    stepC(8)
    A("s_waitcnt vmcnt(0) lgkmcnt(5)")
    stepC(9)
    stamp(A, 6)
    SV = AF + 20
    A(f"""
    s_barrier
    s_lshr_b32 s10, s{S_RT16}, 1
    s_mul_i32 s10, s10, 40
    s_mul_i32 s11, s{S_CBK}, 5
    s_add_u32 s10, s10, s11
    s_lshl_b32 s10, s10, 10
    s_add_u32 s10, s10, {G_H}
    s_add_u32 s10, s10, s{S_GB}
    s_and_b32 s11, s{S_RT16}, 1
    s_lshl_b32 s11, s11, 8
    s_add_u32 s10, s10, s11
    s_add_u32 s11, s10, 4096
    v_and_b32 v5, 15, v2
    v_lshlrev_b32 v7, 4, v5
    v_lshl_add_u32 v7, v4, 9, v7
    v_bfe_u32 v6, v2, 4, 1
    v_lshl_add_u32 v7, v6, 3, v7
    s_waitcnt lgkmcnt(0)
    """)
    for ct in range(5):
        a = ACC + 4*ct
        A(f"v_pk_add_f32 {vr(a,2)}, {vr(a,2)}, {vr(AF+4*ct,2)}")
        A(f"v_pk_add_f32 {vr(a+2,2)}, {vr(a+2,2)}, {vr(AF+4*ct+2,2)}")
        A(f"v_cvt_pk_bf16_f32 v{XR+2*ct}, v{a}, v{a+1}")
        A(f"v_cvt_pk_bf16_f32 v{XR+2*ct+1}, v{a+2}, v{a+3}")
        if ct < 4: A(f"buffer_store_dwordx2 {vr(XR+2*ct,2)}, v7, s[20:23], s10 offen offset:{1024*ct}")
        else:      A(f"buffer_store_dwordx2 {vr(XR+2*ct,2)}, v7, s[20:23], s11 offen")
    A(f"""
    v_mov_b32 v{SV+1}, 0
    v_mov_b32 v{SV+2}, 0
    v_lshlrev_b32 v5, 3, v5
    v_lshl_add_u32 v{SV}, v4, 2, v5       ; stats voffset: row*8 + (lane>>5)*4
    s_lshl_b32 s31, s{S_CBK}, 11
    s_lshl_b32 s29, s{S_RT16}, 7
    s_add_u32 s31, s31, s29
    s_add_u32 s31, s31, {G_ST}
    s_add_u32 s31, s31, s{S_GB}
    """)
    for e in range(10):
        A(f"v_dot2c_f32_bf16 v{SV+1}, s28, v{XR+e}")
        A(f"v_dot2c_f32_bf16 v{SV+2}, v{XR+e}, v{XR+e}")
    A(f"""
    s_lshl_b32 s48, s{S_RT4}, 8
    s_add_u32 s48, s48, s{S_FL}
    s_lshl_b32 s10, s{S_CBK}, 5
    s_lshl_b32 s11, s{S_RT}, 3
    v_permlane32_swap_b32 v{SV+1}, v{SV+2}
    s_add_u32 s10, s10, s11
    s_add_u32 s10, s10, s48
    v_add_f32 v{SV+1}, v{SV+1}, v{SV+2}
    v_mov_b32 v{SV+2}, v{SV+1}
    s_nop 0
    s_nop 0
    v_permlane16_swap_b32 v{SV+1}, v{SV+2}
    s_nop 1
    v_add_f32 v{SV+1}, v{SV+1}, v{SV+2}
    buffer_store_dword v{SV+1}, v{SV}, s[20:23], s31 offen
    """)
    for e in range(10):
        A(f"v_lshlrev_b32 v{ACC+2*e}, 16, v{XR+e}")
        A(f"v_and_b32 v{ACC+2*e+1}, 0xffff0000, v{XR+e}")
    signal(A, "F_g2", "s10")
    stamp(A, 7)
    e_setup()
    A("s_barrier")
    stamp(A, 8)
    A(f"""
    s_mul_i32 s10, s{S_RT}, 30720
    s_add_u32 s65, s65, s10
    s_mul_i32 s67, s{S_RT}, 10240
    s_add_u32 s67, s67, {RED}
    s_mov_b32 s49, {1 if 'nob1' in OPT else 10}
    F_b1:
    s_mov_b32 m0, s67
    s_add_u32 s67, s67, 1024
    buffer_load_dwordx4 v{L16}, s[20:23], s65 offen sc1 lds
    s_add_u32 s65, s65, 1024
    s_sub_u32 s49, s49, 1
    s_cmp_lg_u32 s49, 0
    s_waitcnt vmcnt({BIF})
    s_cbranch_scc1 F_b1
    s_mul_i32 s67, s{S_RT}, 20480
    s_mov_b32 s49, 5
    v_add_u32 v7, s67, v{L16}
    s_add_u32 s50, s65, {1024*(20-NBR)}
    """)
    for j in range(NBR):
        A(f"buffer_load_dwordx4 {vr(28+4*j,4)}, v{L16}, s[20:23], s50 offen offset:{(j%4)*1024} sc1")
        if j % 4 == 3: A("s_add_u32 s50, s50, 4096")
        A(f"s_waitcnt vmcnt({BIF})")
    A("s_waitcnt vmcnt(0)")
    stamp(A, 9)
    A("s_barrier")
    if NBR < 20:
        A(f"""
        F_b2:
        s_mov_b32 m0, s67
        s_add_u32 s67, s67, 2048
        buffer_load_dwordx4 v{L16}, s[20:23], s65 offen sc1 lds
        buffer_load_dwordx4 v{L16}, s[20:23], s65 offen offset:1024 sc1 lds
        s_add_u32 s65, s65, 2048
        s_sub_u32 s49, s49, 1
        s_cmp_lg_u32 s49, 0
        s_waitcnt vmcnt(2)
        s_cbranch_scc1 F_b2
        """)
    for j in range(NBR): A(f"ds_write_b128 v7, {vr(28+4*j,4)} offset:{1024*(20-NBR+j)}")
    A("s_waitcnt vmcnt(0) lgkmcnt(0)")
    stamp(A, 10)
    A(f"""
    s_setprio 1
    s_cmp_lg_u32 s{S_W}, 4
    s_cbranch_scc1 F_s3_done
    """)
    poll(A, "F_s3", L4, "s48", 1024)
    A("F_s3_done:")
    A("s_barrier")
    A("F_e:")
    stamp(A, 11)
    vm.clear()
    NE = 18
    nle = [0]
    def ldE():
        n = nle[0]
        if n >= 24: return
        rt, s_ = divmod(n, 6)
        if s_ == 4: A(f"s_add_u32 s{28+rt}, s{28+rt}, 4096")
        A(f"buffer_load_dwordx4 {vr(AR+4*(n%NE),4)}, v{L16}, s[20:23], s{28+rt} offen offset:{(s_%4)*1024} sc1")
        vm.op(f"a{n}"); nle[0] += 1
    for _ in range(6): ldE()
    A("s_waitcnt lgkmcnt(0)")
    est(4)
    pend = []
    for n in range(24):
        rt, s_ = divmod(n, 6)
        A(f"s_waitcnt vmcnt({vm.need(f'a{n}')})")
        for ct in range(5):
            acc = vr(ACE + 20*(rt & 1) + 4*ct, 4)
            c = "0" if (s_ == 0 and rt > 0) else acc
            A(f"v_mfma_f32_16x16x32_bf16 {acc}, {vr(PK+20*s_+4*ct,4)}, {vr(AR+4*(n%NE),4)}, {c}")
            if ct == 1 and nle[0] < n + NE: ldE()
            if ct == 3 and n < 8 and nle[0] < n + NE: ldE()
            if ct == 4 and pend and s_ >= 1: A(pend.pop(0))
        if s_ == 5:
            pend = [f"ds_write_b128 v{WA+rt}, {vr(ACE+20*(rt&1)+4*ct,4)} offset:{64*ct}" for ct in range(5)]
    est(5)
    A("s_setprio 0")
    for rnd in range(3):
        A(f"v_add_u32 v{AR+2*rnd}, 61440, v{IL+rnd}")
        A(f"v_add_u32 v{AR+2*rnd+1}, 122880, v{IL+rnd}")
    A("s_nop 1")
    for p_ in pend: A(p_)
    A("s_waitcnt lgkmcnt(0)")
    est(6)
    A("s_barrier")
    est(7)
    def fin_read(rnd):
        b = 128 + 32*rnd
        for p in range(8):
            ad = (IL+rnd, AR+2*rnd, AR+2*rnd+1)[p//3]
            A(f"ds_read_b128 {vr(b+4*p,4)}, v{ad} offset:{20480*(p%3)}")
    def fin_sum(rnd):
        b = 128 + 32*rnd
        for st_ in (16, 8, 4):
            for o in range(0, st_, 2):
                A(f"v_pk_add_f32 {vr(b+o,2)}, {vr(b+o,2)}, {vr(b+st_+o,2)}")
        A(f"""
        v_cvt_pk_bf16_f32 v{b}, v{b}, v{b+1}
        v_cvt_pk_bf16_f32 v{b+1}, v{b+2}, v{b+3}
        buffer_store_dwordx2 {vr(b,2)}, v{OA+rnd}, s[40:43], s69 offen
        """)
    fin_read(0)
    A("s_waitcnt lgkmcnt(1)")
    fin_read(1)
    A("s_waitcnt lgkmcnt(8)")
    fin_sum(0)
    A(f"s_cmp_ge_u32 s{S_W}, 4")
    A("s_cbranch_scc1 F_f1")
    A("s_waitcnt lgkmcnt(1)")
    fin_read(2)
    A("s_waitcnt lgkmcnt(8)")
    fin_sum(1)
    A("s_waitcnt lgkmcnt(0)")
    fin_sum(2)
    A("s_branch F_fin")
    A("F_f1:")
    A("s_waitcnt lgkmcnt(0)")
    fin_sum(1)
    A("F_fin:")
    if asmlib.STAMPS:
        A("s_waitcnt vmcnt(0)")
        asmlib.stamp(A, 1)
    stamp_flush(A, 1, 12)
    A("F_end:")
    A("s_endpgm")
    A("F_slow:")
    KS0, KS1 = 44, 20
    A(f"""
    v_lshlrev_b32 v{AK1}, 3, v3
    v_add_u32 v{AK1}, 1024, v{AK1}
    v_subrev_u32 v{AV}, {baseV}, v{AV}
    v_mov_b32 v5, 0xff800000
    s_mov_b32 s31, 0
    s_mov_b32 s10, s29
    """)
    for r in range(16): A(f"v_mov_b32 v{O+r}, 0")
    A("F_sloop:")
    A(f"""
    buffer_load_dwordx4 {vr(KS0,4)}, v{L16}, s[20:23], s10 offen sc1
    buffer_load_dwordx2 {vr(KS1,2)}, v{AK1}, s[20:23], s10 offen sc1
    s_mov_b64 exec, s[32:33]
    buffer_load_dwordx4 {vr(V0,4)}, v{AV}, s[20:23], s10 offen sc1
    buffer_load_dwordx4 {vr(V1,4)}, v{AV}, s[20:23], s10 offen offset:640 sc1
    s_mov_b64 exec, -1
    s_waitcnt vmcnt(0)
    v_mfma_f32_32x32x16_bf16 {vr(SA,16)}, {vr(KS0,4)}, {vr(Q0,4)}, 0
    v_mfma_f32_32x32x8_bf16 {vr(SA,16)}, {vr(KS1,2)}, {vr(Q1,2)}, {vr(SA,16)}
    s_nop 11
    v_max3_f32 v6, v{SA}, v{SA+1}, v5
    """)
    for r in range(2, 16, 2): A(f"v_max3_f32 v6, v{SA+r}, v{SA+r+1}, v6")
    A(f"""
    v_mov_b32 v7, v6
    s_nop 1
    v_permlane32_swap_b32 v6, v7
    s_nop 1
    v_max_f32 v6, v6, v7
    v_sub_f32 v7, v5, v6
    v_exp_f32 v7, v7
    v_mov_b32 v5, v6
    """)
    for r in range(16): A(f"v_mul_f32 v{O+r}, v{O+r}, v7")
    for r in range(16): A(f"v_sub_f32 v{SA+r}, v{SA+r}, v6")
    for r in range(16): A(f"v_exp_f32 v{SA+r}, v{SA+r}")
    A("s_nop 0")
    for e in range(8): A(f"v_cvt_pk_bf16_f32 v{P0+e}, v{SA+2*e}, v{SA+2*e+1}")
    A(f"""
    s_nop 1
    v_mfma_f32_32x32x16_bf16 {vr(O,16)}, {vr(V0,4)}, {vr(P0,4)}, {vr(O,16)}
    v_mfma_f32_32x32x16_bf16 {vr(O,16)}, {vr(V1,4)}, {vr(P1,4)}, {vr(O,16)}
    s_add_u32 s10, s10, 2560
    s_add_u32 s31, s31, 1
    s_cmp_lt_u32 s31, 64
    s_nop 8
    s_cbranch_scc1 F_sloop
    s_nop 3
    s_branch F_out
    F_kend:
    """)
    return dict(name=name, grid=256, block=512, lds=163840, nvgpr=256)
```

```python
from asmlib import *
import asmlib
from layout import *
from main2 import VM, S_TAG
import os
OPT = set(os.environ.get('OPT','').split(','))

def gen_phase_a(A):
    NST, STG = 4, 36864
    TAB = NST * STG
    stamp_rt(A,0); stamp(A,0)
    A(f"""
    s_cmp_ge_u32 s2, 256
    s_cbranch_scc1 F_end
    s_load_dwordx4 s[4:7], s[0:1], 0
    s_load_dwordx4 s[60:63], s[0:1], 64
    s_getpc_b64 s[10:11]
    A_pc:
    s_lshr_b32 s3, s2, 3
    s_lshl_b32 s3, s3, 11
    v_lshlrev_b32 v1, 7, v0
    v_add_u32 v1, s3, v1
    v_min_u32 v1, F_kend-A_pc-4, v1
    v_cmp_gt_u32 vcc, 16, v0
    s_and_saveexec_b64 s[12:13], vcc
    s_cbranch_execz A_nopf
    global_load_dword v255, v1, s[10:11]
    A_nopf:
    s_mov_b64 exec, s[12:13]
    v_lshrrev_b32 v1, 6, v0
    v_and_b32 v2, 63, v0              ; lane
    s_and_b32 s3, s2, 7
    v_readfirstlane_b32 s24, v1       ; wave
    s_lshr_b32 s10, s2, 3
    s_and_b32 s11, s10, 3             ; r
    s_lshr_b32 s10, s10, 2            ; c
    s_lshr_b32 s27, s3, 1
    s_lshl_b32 s27, s27, 2
    s_add_u32 s27, s27, s11           ; rb
    s_and_b32 s28, s3, 1
    s_mul_i32 s28, s28, 6
    s_add_u32 s28, s28, s10           ; cb
    v_and_b32 v3, 31, v2              ; t
    v_lshrrev_b32 v4, 5, v2           ; h
    s_mov_b32 s22, {WS_USED}
    s_mov_b32 s23, 0x20000
    s_mov_b32 s14, {2048*640*2}
    s_mov_b32 s15, 0x20000
    s_mov_b32 s18, {640*1920*2}
    s_mov_b32 s19, 0x20000
    s_sub_u32 s25, s24, 4             ; lw
    s_cmp_ge_u32 s10, 6
    s_cbranch_scc1 A_pack
    s_cmp_lt_u32 s24, 4
    s_cbranch_scc1 A_comp
    s_mul_i32 s31, s11, 15
    s_mul_i32 s10, s10, 10
    s_add_u32 s31, s31, s10
    s_mul_i32 s31, s31, 43
    s_lshr_b32 s31, s31, 8            ; (15r + 10c)/6
    s_sub_u32 s11, s31, 10
    s_cmp_ge_u32 s31, 10
    s_cselect_b32 s31, s11, s31
    s_lshl_b32 s29, s27, 7
    s_lshl_b32 s11, s25, 5
    s_add_u32 s29, s29, s11
    s_mul_i32 s29, s29, 1280
    s_mul_i32 s30, s25, {16*3840}
    s_mul_i32 s11, s28, 320
    s_add_u32 s30, s30, s11
    s_lshl_b32 s33, s25, 12
    s_lshl_b32 s32, s25, 10
    s_add_u32 s32, s32, 16384
    v_lshrrev_b32 v17, 3, v2
    v_mul_u32_u24 v5, 1280, v17
    v_lshrrev_b32 v17, 4, v2
    v_and_b32 v6, 7, v2
    v_xor_b32 v6, v6, v17
    v_lshl_add_u32 v8, v6, 4, v5
    v_xor_b32 v6, 4, v6
    v_lshl_add_u32 v9, v6, 4, v5
    v_add_u32 v9, {8*1280-1024}, v9
    v_add_u32 v10, {16*1280-2048}, v8
    v_add_u32 v11, {16*1280-2048}, v9
    """)
    for i in range(5):
        A(f"""
        v_add_u32 v5, {64*i}, v2
        v_mul_u32_u24 v6, 205, v5
        v_lshrrev_b32 v6, 12, v6
        v_mul_u32_u24 v7, 20, v6
        v_sub_u32 v5, v5, v7
        v_mul_u32_u24 v6, 3840, v6
        v_lshl_add_u32 v{12+i}, v5, 4, v6
        """)
        if 0 < i < 4: A(f"v_subrev_u32 v{12+i}, {1024*i}, v{12+i}")
    A(f"""
    s_waitcnt lgkmcnt(0)
    s_mov_b32 s12, s4
    s_mov_b32 s13, s5
    s_mov_b32 s16, s6
    s_mov_b32 s17, s7
    s_mov_b32 s20, s62
    s_mov_b32 s21, s63
    s_branch A_l0
    A_dma:
    s_lshl_b32 s10, s31, 7
    s_add_u32 s10, s10, s29
    s_mul_i32 s11, s31, {64*3840}
    s_mov_b32 m0, s33
    s_add_u32 s11, s11, s30
    buffer_load_dwordx4 v8, s[12:15], s10 offen lds
    buffer_load_dwordx4 v9, s[12:15], s10 offen offset:1024 lds
    buffer_load_dwordx4 v10, s[12:15], s10 offen offset:2048 lds
    buffer_load_dwordx4 v11, s[12:15], s10 offen offset:3072 lds
    s_add_u32 m0, s33, s32
    s_add_u32 s31, s31, 1
    buffer_load_dwordx4 v12, s[16:19], s11 offen lds
    buffer_load_dwordx4 v13, s[16:19], s11 offen offset:1024 lds
    buffer_load_dwordx4 v14, s[16:19], s11 offen offset:2048 lds
    buffer_load_dwordx4 v15, s[16:19], s11 offen offset:3072 lds
    s_add_u32 m0, m0, 4096
    s_cmp_eq_u32 s31, 10
    buffer_load_dwordx4 v16, s[16:19], s11 offen lds
    s_cselect_b32 s31, 0, s31
    s_add_u32 s33, s33, {STG}
    s_sub_u32 s10, s33, {NST*STG}
    s_cmp_ge_u32 s33, {NST*STG}
    s_cselect_b32 s33, s10, s33
    s_setpc_b64 s[34:35]
    A_l0:
    """)
    vm = VM()
    def dma(c):
        A("s_call_b64 s[34:35], A_dma")
        for _ in range(9): vm.op(f"c{c}")
    def stats_load():
        A(f"""
        s_lshl_b32 s36, s2, 2
        s_add_u32 s36, s36, s25
        s_mul_i32 s37, s36, 2560
        v_mul_u32_u24 v5, 1280, v4
        v_lshl_add_u32 v5, v3, 4, v5
        v_cmp_gt_u32 vcc, 16, v3
        v_mov_b32 v6, 0x40000000
        buffer_load_dwordx4 v[32:35], v5, s[12:15], s37 offen
        v_cndmask_b32 v6, v6, v5, vcc
        buffer_load_dwordx4 v[36:39], v5, s[12:15], s37 offen offset:512
        buffer_load_dwordx4 v[40:43], v6, s[12:15], s37 offen offset:1024
        """)
    def stats_calc():
        A("s_mov_b32 s38, 0x3f803f80")
        A("v_mov_b32 v20, 0")
        A("v_mov_b32 v21, 0")
        for d in range(12):
            A(f"v_dot2c_f32_bf16 v20, s38, v{32+d}")
            A(f"v_dot2c_f32_bf16 v21, v{32+d}, v{32+d}")
        A("s_nop 3")
        for m in ("quad_perm:[1,0,3,2]", "quad_perm:[2,3,0,1]", "row_half_mirror", "row_mirror"):
            A(f"v_add_f32_dpp v20, v20, v20 {m} row_mask:0xf bank_mask:0xf")
            A(f"v_add_f32_dpp v21, v21, v21 {m} row_mask:0xf bank_mask:0xf")
            A("s_nop 1")
        A(f"""
        v_mov_b32 v22, v20
        v_mov_b32 v23, v21
        s_nop 1
        v_permlane16_swap_b32 v20, v22
        v_permlane16_swap_b32 v21, v23
        s_nop 1
        v_add_f32 v20, v20, v22
        v_add_f32 v21, v21, v23
        v_mul_f32 v20, {f32(1/640)}, v20
        v_mul_f32 v21, {f32(1/640)}, v21
        v_fma_f32 v21, -v20, v20, v21
        v_max_f32 v21, 0, v21
        v_add_f32 v21, {f32(EPS)}, v21
        v_rsq_f32 v22, v21
        s_lshl_b32 s36, s36, 5
        s_add_u32 s36, s36, {RS}
        v_lshlrev_b32 v5, 4, v4
        v_mul_f32 v23, v20, v22
        v_sub_f32 v23, 0, v23
        s_mov_b32 exec_lo, 1
        s_mov_b32 exec_hi, 1
        buffer_store_dwordx4 v[22:25], v5, s[20:23], s36 offen sc1
        s_mov_b64 exec, -1
        """)
    def dbg_srd(lab):
        A(f"""
        s_mov_b32 s56, s60
        s_mov_b32 s57, s61
        s_mov_b32 s58, 256
        s_mov_b32 s59, 0x20000
        v_mov_b32 v18, 0
        """)
        if lab:
            A(f"""
            s_cmp_lg_u32 s2, 0
            s_cbranch_scc1 {lab}
            s_cmp_lg_u32 s24, 4
            s_cbranch_scc1 {lab}
            s_memrealtime s[10:11]
            s_waitcnt lgkmcnt(0)
            s_or_b32 s11, s11, 0x80000000
            v_mov_b32 v24, s10
            v_mov_b32 v25, s11
            s_mov_b64 exec, 1
            buffer_store_dwordx2 v[24:25], v18, s[56:59], 0 offen sc1
            s_mov_b64 exec, -1
            {lab}:
            """)
    def tag_load():
        A("buffer_load_dwordx2 v[24:25], v18, s[56:59], 0 offen sc1")
    def tag_check(lab):
        A(f"""
        s_mov_b32 s11, 0x40000
        {lab}:
        v_cmp_gt_i32 vcc, 0, v25
        s_cbranch_vccnz {lab}_ok
        buffer_load_dwordx2 v[24:25], v18, s[56:59], 0 offen sc1
        s_sub_u32 s11, s11, 1
        s_waitcnt vmcnt(0)
        s_cmp_lg_u32 s11, 0
        s_cbranch_scc1 {lab}
        {lab}_ok:
        v_readfirstlane_b32 s{S_TAG}, v24
        v_readfirstlane_b32 s{S_TAG+1}, v25
        """)
    stamp(A,1)
    dbg_srd("A_z1")
    dma(0); dma(1)
    stats_load(); vm.op("st"); vm.op("st"); vm.op("st")
    tag_load(); vm.op("st")
    stamp(A,2)
    for c in range(8):
        A(f"s_waitcnt vmcnt({vm.need(f'c{c}')})")
        A("s_barrier")
        dma(c+2)
        if c == 1:
            A(f"s_waitcnt vmcnt({vm.need('st')})")
            tag_check("A_tk")
            stats_calc(); vm.op("rs")
    A(f"""
    s_lshl_b32 s37, s27, 2
    s_add_u32 s37, s37, s25
    s_lshl_b32 s37, s37, 9
    s_add_u32 s37, s37, {RS}
    v_lshlrev_b32 v19, 4, v3
    s_lshl_b32 s39, s28, 2
    s_add_u32 s39, s39, s25
    s_mul_i32 s39, s39, 320
    s_add_u32 s39, s39, {CSQ}
    v_min_u32 v5, 19, v3
    v_lshlrev_b32 v5, 4, v5
    v_mul_u32_u24 v6, {960*16}, v4
    v_add_u32 v17, v5, v6
    buffer_load_dwordx4 v[28:31], v19, s[20:23], s37 offen sc1
    buffer_load_dwordx4 v[32:35], v17, s[20:23], s39 offen sc1
    """)
    vm.op("fl"); vm.op("fl")
    A(f"s_waitcnt vmcnt({vm.need('c8')})")
    A("s_barrier")
    A(f"""
    s_cmp_lt_u32 s28, 4
    s_cselect_b32 s10, {f32(QSCALE)}, 1.0
    s_lshl_b32 s11, s25, 7
    s_add_u32 s11, s11, {TAB}
    v_lshl_add_u32 v6, v3, 2, s11
    s_lshl_b32 s11, s25, 8
    s_add_u32 s11, s11, {TAB+1024}
    v_lshl_add_u32 v7, v3, 3, s11
    s_mul_i32 s11, s25, 160
    s_add_u32 s11, s11, {TAB+2048}
    v_lshrrev_b32 v5, 1, v5
    v_add_u32 v5, s11, v5
    v_mov_b32 v26, {TAB+3072}
    s_waitcnt vmcnt(2)
    s_barrier
    s_mov_b32 s11, 0x40000
    s_waitcnt vmcnt(0)
    A_rk:
    v_cmp_ne_u64 vcc, s[{S_TAG}:{S_TAG+1}], v[30:31]
    s_mov_b64 s[52:53], vcc
    v_cmp_ne_u64 vcc, s[{S_TAG}:{S_TAG+1}], v[34:35]
    s_or_b64 s[52:53], s[52:53], vcc
    s_cbranch_scc0 A_rk_ok
    buffer_load_dwordx4 v[28:31], v19, s[20:23], s37 offen sc1
    buffer_load_dwordx4 v[32:35], v17, s[20:23], s39 offen sc1
    s_sub_u32 s11, s11, 1
    s_waitcnt vmcnt(0)
    s_cmp_lg_u32 s11, 0
    s_cbranch_scc1 A_rk
    A_rk_ok:
    v_mov_b32 v36, v32
    v_mov_b32 v37, v33
    v_mul_f32 v28, s10, v28
    v_mul_f32 v29, s10, v29
    v_permlane32_swap_b32 v32, v36
    v_permlane32_swap_b32 v33, v37
    ds_write_b32 v6, v28
    ds_write_b32 v6, v29 offset:512
    v_add_f32 v32, v32, v36
    v_add_f32 v33, v33, v37
    ds_write_b64 v7, v[28:29]
    ds_write_b64 v26, v[30:31]
    ds_write_b64 v5, v[32:33]
    s_waitcnt lgkmcnt(0)
    s_barrier
    """)
    stamp(A,3)
    A("s_barrier")
    stamp(A,4)
    A("s_branch F_main")
    A("A_comp:")
    RA0, RB = 8, 12
    XF, WF, ACC, SAD = 16, 24, 64, 144
    A(f"""
    s_mov_b32 s36, {STG}
    s_mov_b32 s34, 0
    v_bfe_u32 v5, v2, 1, 3
    v_xor_b32 v5, v5, v4
    v_lshlrev_b32 v5, 4, v5
    v_lshl_add_u32 v5, v3, 7, v5
    s_lshl_b32 s10, s24, 12
    v_add_u32 v{RA0}, s10, v5
    v_xor_b32 v{RA0+1}, 32, v{RA0}
    v_xor_b32 v{RA0+2}, 64, v{RA0}
    v_xor_b32 v{RA0+3}, 96, v{RA0}
    v_bfe_u32 v5, v2, 2, 2
    v_lshl_add_u32 v6, v4, 3, v5
    v_mul_u32_u24 v6, 320, v6
    v_bfe_u32 v7, v2, 4, 1
    v_lshl_add_u32 v6, v7, 5, v6
    v_add_u32 v{RB}, 16384, v6
    s_and_b32 s42, s28, 3
    s_lshl_b32 s43, s27, 2
    s_add_u32 s43, s43, s24
    s_waitcnt lgkmcnt(0)
    s_mov_b32 s20, s62
    s_mov_b32 s21, s63
    """)
    for r in list(range(XF+4, XF+8)) + list(range(WF+20, ACC + 80)):
        A(f"v_mov_b32 v{r}, 0")
    A("s_cmp_ge_u32 s28, 8")
    A("s_cbranch_scc1 A_preV")
    A(f"""
    v_and_b32 v7, 1, v2
    v_lshl_add_u32 v{RB}, v7, 4, v{RB}
    v_bfe_u32 v7, v2, 1, 1
    v_lshl_add_u32 v{RB}, v7, 3, v{RB}
    s_cmp_lt_u32 s28, 4
    s_cselect_b32 s46, 1, 2
    s_mul_i32 s45, s46, 81920
    s_mul_i32 s46, s46, 1280
    s_cselect_b32 s47, {QF}, {KV}
    s_mul_i32 s43, s43, s46
    s_add_u32 s43, s43, s47
    s_lshl_b32 s10, s42, 3
    s_mul_i32 s10, s10, s45
    s_add_u32 s43, s43, s10
    v_lshlrev_b32 v{SAD}, 4, v3               ; t*16
    v_lshlrev_b32 v{SAD+1}, 3, v3             ; t*8
    v_lshl_add_u32 v{SAD+2}, v4, 9, v{SAD}
    s_sub_u32 s10, s45, 512
    v_mul_lo_u32 v5, v4, s10
    v_add_u32 v{SAD+3}, v5, v{SAD}
    """)
    stamp(A,1); stamp(A,2)
    def loop(vmode, lab):
        def body(emit, q, last=False):
            steps = [(0,0,1),(1,1,0),(2,0,1),(3,1,0)] if not last else [(None,None,1)]
            for ks, bn, bc in steps:
                rds = []
                if ks is not None:
                    rds.append((f"x{bn}", f"ds_read_b128 {vr(XF+4*bn,4)}, v{RA0+ks}"))
                    for j in range(5):
                        rds.append((f"w{bn}{j}", f"ds_read_b64_tr_b16 {vr(WF+20*bn+4*j,2)}, v{RB} offset:{ks*5120+64*j}"))
                        rds.append((f"w{bn}{j}", f"ds_read_b64_tr_b16 {vr(WF+20*bn+4*j+2,2)}, v{RB} offset:{ks*5120+64*j+1280}"))
                for j in range(5):
                    tag = f"w{bc}{j}"
                    idx = [i for i, t in enumerate(q) if t == tag]
                    if idx:
                        n = len(q) - 1 - max(idx)
                        assert n <= 15
                        emit(f"s_waitcnt lgkmcnt({n})")
                        del q[:max(idx)+1]
                    acc = vr(ACC + 16*j, 16)
                    x = vr(XF+4*bc, 4); w = vr(WF+20*bc+4*j, 4)
                    emit(f"v_mfma_f32_32x32x16_bf16 {acc}, {x}, {w}, {acc}" if vmode else f"v_mfma_f32_32x32x16_bf16 {acc}, {w}, {x}, {acc}")
                    for _ in range(3 if j == 0 else 2):
                        if rds:
                            t, ins = rds.pop(0); emit(ins); q.append(t)
                    if ks == 2 and j == 4:
                        emit(f"s_add_u32 s34, s34, 1\ns_and_b32 s10, s34, {NST-1}\ns_cmp_eq_u32 s10, 0\ns_cselect_b32 s35, {(-(NST-1)*STG) & 0xffffffff:#x}, s36")
                    if ks == 3 and j >= 1: emit(f"v_add_u32 v{RA0+j-1}, s35, v{RA0+j-1}")
                if ks == 3:
                    emit(f"v_add_u32 v{RB}, s35, v{RB}\ns_cmp_lt_u32 s34, 10")
        q = []
        body(lambda s: None, q)
        A(f"{lab}:")
        A("s_barrier")
        q2 = list(q)
        body(A, q2)
        assert q2 == q
        A(f"s_cbranch_scc1 {lab}")
        body(A, q2, last=True)
        stamp(A,3)
    loop(0, "A_loopQ")
    CSR, AB = 152, 14
    A(f"""
    s_lshl_b32 s10, s24, 8
    s_add_u32 s10, s10, {TAB+1024}
    v_lshl_add_u32 v5, v3, 3, s10
    v_lshlrev_b32 v6, 5, v4
    v_add_u32 v6, {TAB+2048}, v6
    s_barrier
    ds_read_b64 v[{AB}:{AB+1}], v5
    """)
    def csrd(g):
        A(f"ds_read_b128 {vr(CSR+8*g,4)}, v6 offset:{64*g}")
        A(f"ds_read_b128 {vr(CSR+8*g+4,4)}, v6 offset:{64*g+16}")
    for g in range(6): csrd(g)
    ab = vr(AB, 2)
    def off(G):
        p, m = divmod(G, 5)
        return (2*p, 512*m) if m < 2 else (2*p+1, 512*(m-3))
    for g in range(10):
        A(f"s_waitcnt lgkmcnt({min(10, 2*(9-g))})")
        if g + 6 < 10: csrd(g+6)
        base = ACC + 8*g
        cs = CSR + 8*g
        for e in range(0, 8, 2): A(f"v_pk_mul_f32 {vr(cs+e,2)}, {ab}, {vr(cs+e,2)} op_sel:[1,0] op_sel_hi:[1,1]")
        for e in range(0, 8, 2): A(f"v_pk_fma_f32 {vr(base+e,2)}, {vr(base+e,2)}, {ab}, {vr(cs+e,2)} op_sel_hi:[1,0,1]")
        G0 = 2*g; m0 = G0 % 5
        def so(a): A(f"s_mul_i32 s10, s45, {a}\ns_add_u32 s10, s10, s43")
        if m0 in (0, 3, 4): so(off(G0)[0])
        else: so(off(G0 + (1 if m0 == 2 else 0))[0])
        for e in range(4): A(f"v_cvt_pk_bf16_f32 v{base+e}, v{base+2*e}, v{base+2*e+1}")
        if m0 in (0, 3):
            A(f"buffer_store_dwordx4 {vr(base,4)}, v{SAD+2}, s[20:23], s10 offen sc1")
        elif m0 == 4:
            A(f"buffer_store_dwordx4 {vr(base,4)}, v{SAD+3}, s[20:23], s10 offen offset:512 sc1")
        else:
            Gn = G0 + (1 if m0 == 2 else 0); Gm = G0 + (0 if m0 == 2 else 1)
            A("s_mov_b32 exec_lo, 0" if m0 == 2 else "s_mov_b32 exec_hi, 0")
            A(f"buffer_store_dwordx4 {vr(base,4)}, v{SAD}, s[20:23], s10 offen offset:{off(Gn)[1]} sc1")
            A("s_not_b64 exec, exec")
            so(2*(Gm//5))
            A(f"buffer_store_dwordx2 {vr(base,2)}, v{SAD+1}, s[20:23], s10 offen offset:1024 sc1")
            A("s_add_u32 s10, s10, s45")
            A(f"buffer_store_dwordx2 {vr(base+2,2)}, v{SAD+1}, s[20:23], s10 offen offset:1024 sc1")
            A("s_mov_b64 exec, -1")
    A("s_branch A_cdone")
    A("A_preV:")
    A(f"""
    v_and_b32 v7, 3, v2
    v_lshl_add_u32 v{RB}, v7, 3, v{RB}
    s_mul_i32 s43, s43, 2560
    s_add_u32 s43, s43, {KV}
    s_mul_i32 s10, s42, {8*163840}
    s_add_u32 s43, s43, s10
    s_mov_b32 s45, 163840
    v_mul_u32_u24 v13, 320, v4
    v_add_u32 v13, 1280, v13
    """)
    for j in range(5):
        A(f"""
        v_add_u32 v5, {32*j}, v3
        v_mul_u32_u24 v6, 205, v5
        v_lshrrev_b32 v6, 12, v6
        v_mul_u32_u24 v7, 20, v6
        v_sub_u32 v5, v5, v7
        v_mul_lo_u32 v6, v6, s45
        v_lshl_add_u32 v5, v5, 4, v13
        v_add_u32 v{SAD+j}, v5, v6
        """)
    stamp(A,1); stamp(A,2)
    loop(1, "A_loopV")
    AT, BT, CV = 152, 168, 184
    A(f"""
    v_lshlrev_b32 v5, 2, v3
    v_add_u32 v5, {TAB+2048}, v5
    s_lshl_b32 s10, s24, 7
    s_add_u32 s10, s10, {TAB}
    v_lshl_add_u32 v6, v4, 4, s10
    s_barrier
    """)
    for j in range(5): A(f"ds_read_b32 v{CV+2*j}, v5 offset:{128*j}")
    for g in range(4):
        A(f"ds_read_b128 {vr(AT+4*g,4)}, v6 offset:{32*g}")
        A(f"ds_read_b128 {vr(BT+4*g,4)}, v6 offset:{512+32*g}")
    for m in range(2):
        A(f"s_waitcnt lgkmcnt({4-4*m})")
        for j in range(5):
            base = ACC + 16*j + 8*m
            tmp = 16 + 8*(j & 1)
            for e in range(4): A(f"v_pk_mul_f32 {vr(tmp+2*e,2)}, {vr(BT+8*m+2*e,2)}, {vr(CV+2*j,2)} op_sel_hi:[1,0]")
            for e in range(4): A(f"v_pk_fma_f32 {vr(base+2*e,2)}, {vr(base+2*e,2)}, {vr(AT+8*m+2*e,2)}, {vr(tmp+2*e,2)}")
            for e in range(4): A(f"v_cvt_pk_bf16_f32 v{base+e}, v{base+2*e}, v{base+2*e+1}")
            A(f"buffer_store_dwordx4 {vr(base,4)}, v{SAD+j}, s[20:23], s43 offen offset:{640*m} sc1")
    A("A_cdone:")
    stamp(A,4)
    A(f"""
    v_mov_b32 v7, {TAB+3072}
    ds_read_b64 v[8:9], v7
    s_lshl_b32 s10, s28, 4
    s_add_u32 s10, s10, s27
    s_lshl_b32 s10, s10, 7
    s_add_u32 s10, s10, {FA}
    v_mov_b32 v6, 0
    s_waitcnt lgkmcnt(0)
    v_readfirstlane_b32 s{S_TAG}, v8
    v_readfirstlane_b32 s{S_TAG+1}, v9
    s_waitcnt vmcnt(0)
    s_barrier
    s_cmp_lg_u32 s24, 0
    s_cbranch_scc1 F_main
    s_mov_b64 exec, 1
    buffer_store_dwordx2 v[8:9], v6, s[20:23], s10 offen sc1
    s_mov_b64 exec, -1
    s_branch F_main
    """)
    RL = 131072
    A(f"""
    A_pack:
    s_load_dwordx4 s[44:47], s[0:1], 32
    s_load_dwordx2 s[48:49], s[0:1], 48       ; down
    s_load_dwordx2 s[50:51], s[0:1], 16       ; wo
    s_sub_u32 s26, s2, 192
    v_lshrrev_b32 v8, 3, v2
    v_and_b32 v9, 7, v2
    v_lshlrev_b32 v9, 4, v9
    v_mul_u32_u24 v10, 3840, v8
    v_add_u32 v10, v10, v9
    s_lshr_b32 s10, s26, 1
    s_lshl_b32 s29, s10, 7
    s_and_b32 s11, s26, 1
    s_mul_i32 s11, s11, 320
    s_mul_i32 s30, s24, 40
    s_add_u32 s11, s11, s30
    s_mul_i32 s11, s11, 3840
    s_add_u32 s29, s29, s11
    s_cmp_ge_u32 s26, 60
    s_cselect_b32 s29, 0x40000000, s29
    s_waitcnt lgkmcnt(0)
    s_mov_b32 s12, s4
    s_mov_b32 s13, s5
    s_mov_b32 s16, s6
    s_mov_b32 s17, s7
    s_mov_b32 s20, s62
    s_mov_b32 s21, s63
    """)
    for i in range(5):
        A(f"buffer_load_dwordx4 {vr(44+4*i,4)}, v10, s[16:19], s29 offen")
        A(f"s_add_u32 s29, s29, {8*3840}")
    dbg_srd(None)
    A("s_cmp_lt_u32 s24, 4")
    A("s_cbranch_scc1 A_p0")
    stats_load()
    A("A_p0:")
    tag_load()
    A(f"""
    v_mul_u32_u24 v11, 3072, v8
    v_add_u32 v11, v11, v9
    v_mul_u32_u24 v12, 1280, v8
    v_add_u32 v12, v12, v9
    v_lshrrev_b32 v13, 2, v8
    v_mul_u32_u24 v13, 40, v13
    v_and_b32 v14, 3, v8
    v_add_u32 v13, v13, v14
    v_add_u32 v13, 16, v13
    v_mul_u32_u24 v13, 1280, v13
    v_add_u32 v13, v13, v9
    s_lshl_b32 s40, s24, 6
    s_add_u32 s40, s40, s26
    s_lshl_b32 s41, s24, 14
    s_mov_b32 s64, s40
    s_mov_b32 s65, s41
    s_mov_b32 s55, 0x20000
    v_bfe_u32 v5, v2, 2, 2
    v_bfe_u32 v7, v2, 4, 1
    v_and_b32 v8, 3, v2
    v_lshl_add_u32 v14, v4, 3, v5
    v_lshlrev_b32 v14, 7, v14
    v_lshl_add_u32 v14, v7, 11, v14
    v_lshl_add_u32 v14, v8, 3, v14
    v_lshl_add_u32 v15, v7, 2, v5
    v_lshl_add_u32 v15, v4, 4, v15
    v_lshlrev_b32 v15, 7, v15
    v_lshl_add_u32 v15, v8, 3, v15
    v_lshlrev_b32 v1, 4, v2
    s_branch A_pm
    A_p1:
    s_mov_b32 m0, s41
    s_cmp_lt_u32 s40, 960
    s_cbranch_scc0 A_p2
    s_mul_i32 s10, s40, 2731
    s_lshr_b32 s10, s10, 16                   ; ks16 = T/24
    s_mul_i32 s11, s10, 24
    s_sub_u32 s11, s40, s11
    s_mul_i32 s10, s10, {16*3072}
    s_lshl_b32 s11, s11, 7
    s_add_u32 s10, s10, s11
    s_add_u32 s11, s10, {8*3072-1024}
    s_mov_b32 s52, s44
    s_mov_b32 s53, s45
    s_mov_b32 s54, {640*1536*2}
    buffer_load_dwordx4 v11, s[52:55], s10 offen lds
    buffer_load_dwordx4 v11, s[52:55], s11 offen offset:1024 lds
    s_add_u32 m0, s41, 2048
    s_mov_b32 s52, s46
    s_mov_b32 s53, s47
    buffer_load_dwordx4 v11, s[52:55], s10 offen lds
    buffer_load_dwordx4 v11, s[52:55], s11 offen offset:1024 lds
    s_branch A_p5
    A_p2:
    s_sub_u32 s42, s40, 960
    s_mul_i32 s10, s42, 6554
    s_lshr_b32 s10, s10, 16                   ; ks32 (0..67)
    s_mul_i32 s11, s10, 10
    s_sub_u32 s11, s42, s11
    s_lshl_b32 s11, s11, 7
    s_cmp_lt_u32 s10, 48
    s_cbranch_scc0 A_p3
    s_mul_i32 s10, s10, {32*1280}
    s_add_u32 s10, s10, s11
    s_mov_b32 s52, s48
    s_mov_b32 s53, s49
    s_mov_b32 s54, {1536*640*2}
    s_mov_b32 s42, {16*1280-2048}
    s_branch A_p4
    A_p3:
    s_mov_b32 s52, s50
    s_mov_b32 s53, s51
    s_mov_b32 s54, {640*640*2}
    s_cmp_lt_u32 s10, 64
    s_cbranch_scc0 A_p6
    s_sub_u32 s10, s10, 48
    s_mul_i32 s10, s10, {40*1280}
    s_add_u32 s10, s10, s11
    s_mov_b32 s42, {20*1280-2048}
    A_p4:
    s_add_u32 s11, s10, {8*1280-1024}
    buffer_load_dwordx4 v12, s[52:55], s10 offen lds
    buffer_load_dwordx4 v12, s[52:55], s11 offen offset:1024 lds
    s_add_u32 s10, s10, s42
    s_add_u32 s11, s11, s42
    buffer_load_dwordx4 v12, s[52:55], s10 offen offset:2048 lds
    buffer_load_dwordx4 v12, s[52:55], s11 offen offset:3072 lds
    s_branch A_p5
    A_p6:
    s_sub_u32 s10, s10, 64
    s_mul_i32 s10, s10, {160*1280}
    s_add_u32 s10, s10, s11
    s_add_u32 s11, s10, {20*1280-1024}
    buffer_load_dwordx4 v13, s[52:55], s10 offen lds
    buffer_load_dwordx4 v13, s[52:55], s11 offen offset:1024 lds
    s_add_u32 s10, s10, {80*1280-2048}
    s_add_u32 s11, s11, {80*1280-2048}
    buffer_load_dwordx4 v13, s[52:55], s10 offen offset:2048 lds
    buffer_load_dwordx4 v13, s[52:55], s11 offen offset:3072 lds
    A_p5:
    s_add_u32 s40, s40, 512
    s_add_u32 s41, s41, 4096
    s_setpc_b64 s[34:35]
    A_q1:
    s_cmp_lt_u32 s64, 960
    s_cbranch_scc0 A_q2
    s_mul_i32 s10, s64, 2731
    s_lshr_b32 s10, s10, 16
    s_mul_i32 s11, s10, 24
    s_sub_u32 s42, s64, s11
    s_mul_i32 s43, s10, 3072
    s_add_u32 s43, s43, {WGP}
    s_mov_b32 s66, 3
    s_mov_b32 s67, 342
    s_mov_b32 s68, 122880
    v_add_u32 v5, s65, v14
    v_add_u32 v6, 512, v5
    s_branch A_q4
    A_q2:
    s_sub_u32 s42, s64, 960
    s_mul_i32 s10, s42, 6554
    s_lshr_b32 s10, s10, 16
    s_mul_i32 s11, s10, 10
    s_sub_u32 s42, s42, s11
    s_mul_i32 s43, s10, 5120
    s_mov_b32 s66, 5
    s_mov_b32 s67, 205
    s_mov_b32 s68, 245760
    s_add_u32 s43, s43, {WDP}
    s_cmp_lt_u32 s10, 48
    s_cbranch_scc1 A_q3
    s_mov_b32 s68, 102400
    s_add_u32 s43, s43, {WOP-WDP-48*5120}
    A_q3:
    v_add_u32 v5, s65, v15
    v_add_u32 v6, 1024, v5
    A_q4:
    s_lshl_b32 s42, s42, 2
    """)
    PR = 128
    for t in range(4):
        A(f"ds_read_b64_tr_b16 {vr(PR+4*t,2)}, v5 offset:{32*t}")
        A(f"ds_read_b64_tr_b16 {vr(PR+2+4*t,2)}, v6 offset:{32*t}")
    for t in range(4):
        A(f"""
        s_add_u32 s10, s42, {t}
        s_mul_i32 s11, s10, s67
        s_lshr_b32 s11, s11, 10
        s_mul_i32 s29, s11, s66
        s_sub_u32 s10, s10, s29
        s_lshl_b32 s10, s10, 10
        s_mul_i32 s11, s11, s68
        s_add_u32 s10, s10, s11
        s_add_u32 s10, s10, s43
        s_waitcnt lgkmcnt({6-2*t})
        buffer_store_dwordx4 {vr(PR+4*t,4)}, v1, s[20:23], s10 offen sc1
        """)
    A(f"""
    s_add_u32 s64, s64, 512
    s_add_u32 s65, s65, 4096
    s_setpc_b64 s[34:35]
    A_pm:
    s_call_b64 s[34:35], A_p1
    s_waitcnt vmcnt(4)
    """)
    tag_check("A_tk2")
    for e in range(8): A(f"v_mov_b32 v{64+e}, 0")
    for d in range(20):
        e = 2*(d % 4)
        A(f"v_lshlrev_b32 v5, 16, v{44+d}")
        A(f"v_and_b32 v6, 0xffff0000, v{44+d}")
        A(f"v_add_f32 v{64+e}, v{64+e}, v5")
        A(f"v_add_f32 v{65+e}, v{65+e}, v6")
    A("s_nop 1")
    for e in range(8): A(f"v_add_f32_dpp v{64+e}, v{64+e}, v{64+e} row_ror:8 row_mask:0xf bank_mask:0xf")
    for e in range(8): A(f"v_mov_b32 v{72+e}, v{64+e}")
    A("s_nop 1")
    for e in range(8): A(f"v_permlane16_swap_b32 v{64+e}, v{72+e}")
    A("s_nop 1")
    for e in range(8): A(f"v_add_f32 v{64+e}, v{64+e}, v{72+e}")
    for e in range(8): A(f"v_mov_b32 v{72+e}, v{64+e}")
    A("s_nop 1")
    for e in range(8): A(f"v_permlane32_swap_b32 v{64+e}, v{72+e}")
    A("s_nop 1")
    for e in range(8): A(f"v_add_f32 v{64+e}, v{64+e}, v{72+e}")
    A(f"""
    s_lshl_b32 s10, s24, 8
    s_add_u32 s10, s10, {RL}
    v_lshl_add_u32 v5, v9, 1, s10
    ds_write_b128 v5, v[64:67]
    ds_write_b128 v5, v[68:71] offset:16
    s_cmp_lt_u32 s24, 4
    s_cbranch_scc1 A_p8
    """)
    stats_calc()
    A(f"""
    A_p8:
    s_waitcnt lgkmcnt(0)
    s_barrier
    s_cmp_lg_u32 s24, 0
    s_cbranch_scc1 A_p7
    s_cmp_ge_u32 s26, 60
    s_cbranch_scc1 A_p7
    v_lshlrev_b32 v5, 3, v3
    v_add_u32 v5, {RL}, v5
    """)
    for w in range(8): A(f"ds_read_b64 {vr(64+2*w,2)}, v5 offset:{256*w}")
    A(f"""
    s_lshr_b32 s10, s26, 1
    s_lshl_b32 s10, s10, 9
    s_and_b32 s11, s26, 1
    s_mul_i32 s11, s11, {960*16}
    s_add_u32 s10, s10, s11
    s_add_u32 s10, s10, {CSQ}
    v_lshlrev_b32 v5, 4, v3
    s_waitcnt lgkmcnt(0)
    v_pk_add_f32 v[64:65], v[64:65], v[72:73]
    v_pk_add_f32 v[66:67], v[66:67], v[74:75]
    v_pk_add_f32 v[68:69], v[68:69], v[76:77]
    v_pk_add_f32 v[70:71], v[70:71], v[78:79]
    v_pk_add_f32 v[64:65], v[64:65], v[68:69]
    v_pk_add_f32 v[66:67], v[66:67], v[70:71]
    v_pk_add_f32 v[22:23], v[64:65], v[66:67]
    s_mov_b32 exec_hi, 0
    buffer_store_dwordx4 v[22:25], v5, s[20:23], s10 offen sc1
    s_mov_b32 exec_hi, -1
    A_p7:
    s_call_b64 s[34:35], A_p1
    s_call_b64 s[34:35], A_p1
    s_cmp_ge_u32 s40, 1640
    s_cbranch_scc1 A_p9
    s_call_b64 s[34:35], A_p1
    s_waitcnt vmcnt(12)
    s_call_b64 s[34:35], A_q1
    A_p9:
    s_waitcnt vmcnt(8)
    s_call_b64 s[34:35], A_q1
    s_waitcnt vmcnt(8)
    s_call_b64 s[34:35], A_q1
    s_waitcnt vmcnt(8)
    s_call_b64 s[34:35], A_q1
    """)
    stamp(A,1); stamp(A,2); stamp(A,3); stamp(A,4)
    assert all((T*2731)>>16 == T//24 for T in range(960))
    assert all((T*6554)>>16 == T//10 for T in range(680))
    assert all((e*205)>>12 == e//20 for e in range(320))
    assert all(((15*r+10*c)*43)>>8 == (15*r+10*c)//6 for r in range(4) for c in range(6))
```

```python
import sys
import asmlib
asmlib.STAMPS = 'stamps' in sys.argv
from asmlib import *
import main2
NAME = "sequential_preLN__softmax_full_mha__geglu_ffn__prompt_kernel"
REF = open("sequential_preLN__softmax_full_mha__geglu_ffn__prompt.s.ref").read()
head = "".join(l + "\n" for l in REF.split("\n") if l.startswith(";") and "@launch" not in l)
A = Asm()
A('.amdgcn_target "amdgcn-amd-amdhsa--gfx950"')
A(".text")
k = main2.gen_main(A, NAME)
out = head
if 'list' in sys.argv: out = out.replace("launch list", "list") + f"; @launch kernel={k['name']} grid=({k['grid']},1,1) block=({k['block']},1,1) lds={k['lds']}\n"
else: out += f"; @launch grid=({k['grid']},1,1) block=({k['block']},1,1) lds={k['lds']}\n"
out += A.text()
out += '.section .rodata,"a"\n'
out += kernel_desc(k["name"], k["nvgpr"])
path = sys.argv[1] if len(sys.argv) > 1 and sys.argv[1].endswith(".s") else "sequential_preLN__softmax_full_mha__geglu_ffn__prompt.s"
open(path, "w").write(out)
print("wrote", path, len(out))
```

```python
from asmlib import *
import asmlib
from layout import *
import math, os
OPT = set(os.environ.get('OPT','').split(','))

class VM:
    def __init__(self): self.q = []
    def op(self, tag): self.q.append(tag)
    def need(self, tag):
        idx = max(i for i, t in enumerate(self.q) if t == tag)
        n = len(self.q) - 1 - idx
        assert n <= 63
        return n
    def clear(self): self.q = []
    def mark(self, tag): self.m = getattr(self, 'm', {}); self.m[tag] = len(self.q)
    def since(self, tag): return len(self.q) - self.m[tag]

VO80, TCH, XT, JUNK, L4, L16 = 112, 121, 122, 123, 124, 125
PK = 128
XL = 102400
RED = 122880
CSP = 143360
S_W, S_G, S_IDX = 24, 25, 26
S_HD, S_QB = 38, 39
S_TAG = 98
S_GB, S_FL, S_MODE, S_XCC = 52, 53, 54, 55
S_RT4, S_CBK, S_RT, S_KH, S_RT16 = 56, 57, 58, 59, 66

def poll(A, name, voff, soff, off=0, acquire=True, sleep=0):
    A(f"""
    s_mov_b32 s11, 0x40000
    {name}_poll:
    {f's_sleep {sleep}' if sleep else ''}
    buffer_load_dwordx2 v[6:7], v{voff}, s[20:23], {soff} offen offset:{off} sc1
    s_sub_u32 s11, s11, 1
    s_cmp_eq_u32 s11, 0
    s_cbranch_scc1 {name}_got
    s_waitcnt vmcnt(0)
    v_cmp_ne_u64 vcc, s[{S_TAG}:{S_TAG+1}], v[6:7]
    s_cbranch_vccnz {name}_poll
    {name}_got:
    """)
    if acquire:
        A(f"""
        s_cmp_eq_u32 s{S_MODE}, 0
        s_cbranch_scc1 {name}_p1
        buffer_inv sc1
        s_waitcnt vmcnt(0)
        {name}_p1:
        """)

def signal(A, name, soff):
    A(f"""
    v_mov_b32 v6, s{S_TAG}
    v_mov_b32 v7, s{S_TAG+1}
    v_mov_b32 v5, 0
    s_waitcnt vmcnt(0)
    s_mov_b64 exec, 1
    s_cmp_lg_u32 s{S_MODE}, 0
    s_cbranch_scc1 {name}_slow
    buffer_store_dwordx2 v[6:7], v5, s[20:23], {soff} offen
    s_branch {name}_p0
    {name}_slow:
    buffer_wbl2 sc1
    s_waitcnt vmcnt(0)
    buffer_store_dwordx2 v[6:7], v5, s[20:23], {soff} offen sc0 sc1
    {name}_p0:
    s_mov_b64 exec, -1
    """)

NBR = int(os.environ.get('NBR', 10))
BIF = int(os.environ.get('BIF', 2))
def gen_main(A, name):
    import phasea
    kernel_begin(A, name)
    if 'sta' in OPT:
        phasea.stamp = lambda A, i: asmlib.stamp(A, i+1 if i else 0)
        stamp = lambda A, i: asmlib.stamp(A, {2: 8, 3: 9, 5: 10, 11: 11}[i]) if i in (2, 3, 5, 11) else None
        sta = lambda i: asmlib.stamp(A, i)
    else:
        phasea.stamp = lambda A, i: asmlib.stamp(A, 0) if i == 0 else None
        stamp = asmlib.stamp
        sta = lambda i: None
    phasea.gen_phase_a(A)
    vm = VM()
    Q0, Q1, K0, K1, V0, V1, P0, P1 = 8, 12, 16, 20, 24, 28, 32, 36
    AK0, AK1, AV = 40, 41, 42
    NEGM, SA, SB, O = 48, 64, 80, 96
    A("F_main:")
    sta(6)
    QL = 151552
    A(f"""
    s_load_dwordx2 s[6:7], s[0:1], 56
    s_mov_b32 s8, s62
    s_mov_b32 s9, s63
    s_and_b32 s{S_G}, s2, 7
    s_lshr_b32 s{S_IDX}, s2, 3
    s_and_b32 s10, s{S_IDX}, 3
    s_lshl_b32 s{S_HD}, s{S_G}, 2
    s_add_u32 s{S_HD}, s{S_HD}, s10
    s_lshr_b32 s{S_QB}, s{S_IDX}, 2
    s_lshr_b32 s64, s{S_HD}, 3
    s_lshl_b32 s64, s64, 11
    s_add_u32 s64, s64, {FA}
    v_lshrrev_b32 v5, 2, v2
    v_lshlrev_b32 v5, 7, v5
    v_and_b32 v6, 3, v2
    v_lshl_add_u32 v14, v6, 3, v5
    v_lshlrev_b32 v{L16}, 4, v2
    s_mul_i32 s29, s{S_HD}, 163840
    s_add_u32 s37, s29, 163840
    s_mul_i32 s34, s{S_QB}, 20480
    s_add_u32 s34, s34, s29
    s_cmp_lt_u32 s{S_W}, 4
    s_cbranch_scc1 F_m1
    v_and_b32 v15, 8, v14
    v_bfe_u32 v7, v2, 1, 2
    v_min_u32 v7, 2, v7
    v_lshl_add_u32 v15, v7, 13, v15
    s_sub_u32 s10, s{S_W}, 4
    s_lshl_b32 s11, s{S_QB}, 8
    s_add_u32 s31, s64, s11
    s_lshr_b32 s11, s10, 1
    s_lshl_b32 s11, s11, 7
    s_add_u32 s31, s31, s11
    s_and_b32 s11, s10, 1
    s_lshl_b32 s11, s11, 4
    s_add_u32 s31, s31, s11
    s_lshl_b32 s28, s{S_HD}, 3
    s_add_u32 s28, s28, s{S_QB}
    s_lshl_b32 s28, s28, 2
    s_add_u32 s28, s28, s10
    s_mul_i32 s28, s28, 2560
    s_add_u32 s28, s28, {QF}
    """)
    poll(A, "F_s0", 15, "s31", 0, acquire=False, sleep=int(os.environ.get('SL', 10)))
    A(f"""
    s_mul_i32 s11, s10, 2560
    s_add_u32 m0, s11, {QL}
    s_mul_i32 s11, s10, 5120
    buffer_load_dwordx4 v{L16}, s[20:23], s28 offen sc1 lds
    buffer_load_dwordx4 v{L16}, s[20:23], s28 offen offset:1024 sc1 lds
    s_mov_b32 exec_hi, 0
    buffer_load_dwordx4 v{L16}, s[20:23], s28 offen offset:2048 sc1 lds
    s_mov_b32 exec_hi, -1
    s_mov_b32 m0, s11
    s_add_u32 s11, s11, s34
    buffer_load_dwordx4 v{L16}, s[20:23], s11 offen sc1 lds
    buffer_load_dwordx4 v{L16}, s[20:23], s11 offen offset:1024 sc1 lds
    buffer_load_dwordx4 v{L16}, s[20:23], s11 offen offset:2048 sc1 lds
    buffer_load_dwordx4 v{L16}, s[20:23], s11 offen offset:3072 sc1 lds
    s_add_u32 m0, m0, 4096
    s_add_u32 s11, s11, 4096
    buffer_load_dwordx4 v{L16}, s[20:23], s11 offen sc1 lds
    F_m1:
    v_lshlrev_b32 v{AK1}, 3, v3
    v_add_u32 v{AK1}, 1024, v{AK1}
    s_lshl_b32 s30, s{S_W}, 10
    s_add_u32 s30, s30, 20480
    s_add_u32 s34, s34, s30
    s_sub_u32 s10, s34, 163840
    s_cmp_ge_u32 s34, s37
    s_cselect_b32 s34, s10, s34
    s_waitcnt lgkmcnt(0)
    """)
    sta(7)
    kvr = [0]
    def kv_round():
        last = kvr[0] == 17
        if last:
            A(f"s_cmp_ge_u32 s{S_W}, 4")
            A("s_cbranch_scc1 F_kvl")
        A(f"""
        s_mov_b32 m0, s30
        s_add_u32 s30, s30, 8192
        buffer_load_dwordx4 v{L16}, s[20:23], s34 offen sc1 lds
        s_add_u32 s34, s34, 8192
        s_sub_u32 s10, s34, 163840
        s_cmp_ge_u32 s34, s37
        s_cselect_b32 s34, s10, s34
        """)
        if last:
            A("F_kvl:"); vm.mark("kvl")
        else: vm.op(f"kv{kvr[0]}")
        kvr[0] += 1
    srd(A, 12, 4, 2048*640*2)
    srd(A, 40, 6, 2048*640*2)
    A(f"""
    s_getreg_b32 s{S_XCC}, hwreg(HW_REG_XCC_ID)
    v_lshlrev_b32 v{AK0}, 4, v2
    s_mul_i32 s{S_GB}, s{S_G}, {GRP_SZ}
    s_add_u32 s{S_GB}, s{S_GB}, {GRP}
    s_lshl_b32 s{S_FL}, s{S_G}, 11
    s_add_u32 s{S_FL}, s{S_FL}, {FL}
    s_and_b32 s{S_XCC}, s{S_XCC}, 15
    s_add_u32 s{S_XCC}, s{S_XCC}, 1
    v_mul_u32_u24 v5, 20, v4
    v_add_u32 v5, v5, v3
    v_lshlrev_b32 v5, 4, v5
    v_add_u32 v{AV}, 1280, v5
    s_mov_b32 s32, 0x000fffff
    s_mov_b32 s33, 0x000fffff
    v_lshlrev_b32 v{L4}, 3, v3
    v_lshlrev_b32 v{TCH}, 7, v2
    s_lshr_b32 s{S_RT4}, s{S_IDX}, 3
    s_and_b32 s{S_CBK}, s{S_IDX}, 7
    s_add_u32 s{S_RT}, s{S_W}, s{S_CBK}
    s_and_b32 s{S_RT}, s{S_RT}, 3
    s_lshr_b32 s{S_KH}, s{S_W}, 2
    s_lshl_b32 s10, s{S_RT4}, 2
    s_add_u32 s{S_RT16}, s10, s{S_RT}
    """)
    for i in range(2):
        A(f"""
        v_add_u32 v5, {512*i}, v0
        v_mul_u32_u24 v6, 6554, v5
        v_lshrrev_b32 v6, 16, v6
        v_mul_u32_u24 v7, 10, v6
        v_sub_u32 v5, v5, v7
        v_mul_u32_u24 v6, 1280, v6
        v_lshl_add_u32 v{VO80+i}, v5, 4, v6
        """)
    A(f"""
    s_mul_i32 s65, s{S_CBK}, {48*5120}
    s_add_u32 s65, s65, {WDP}
    s_mul_i32 s35, s{S_IDX}, 122880
    s_add_u32 s35, s35, {WGP}
    s_cmp_eq_u32 s{S_KH}, 0
    s_cselect_b32 s35, s35, s65
    s_mul_i32 s10, s{S_W}, 30720
    s_add_u32 s35, s35, s10
    s_lshl_b32 s67, s{S_W}, 10         ; W_C lds
    s_mul_i32 s68, s{S_CBK}, 102400
    s_add_u32 s68, s68, s67
    s_add_u32 s68, s68, {WOP}
    s_lshl_b32 s11, s{S_G}, 2
    s_add_u32 s11, s11, s{S_RT4}
    s_mul_i32 s69, s11, {64*1280}
    s_mul_i32 s10, s{S_CBK}, 160
    s_add_u32 s69, s69, s10
    s_mul_i32 s36, s{S_IDX}, {(GRP_SZ-G_T)//32}
    s_mul_i32 s10, s{S_W}, {25*128}
    s_add_u32 s36, s36, s10
    s_add_u32 s36, s36, {G_T}
    s_add_u32 s36, s36, s{S_GB}
    s_mov_b32 s50, {FP}
    s_mov_b32 s51, {FP+192*128}
    v_and_b32 v5, 27, v2
    v_cmp_eq_u32 vcc, 24, v5
    v_mov_b32 v6, 0x3f803f80
    s_nop 1
    """)
    for r in range(8): A(f"v_cndmask_b32 v{V0+r}, 0, v6, vcc")
    for r in range(16): A(f"v_mov_b32 v{O+r}, 0")
    for r in range(4): A(f"v_mov_b32 v{P1+r}, 0")
    A(f"""
    s_mul_i32 s10, s{S_W}, 1280
    s_add_u32 s10, s10, {QL}
    v_add_u32 v5, s10, v{AK0}
    v_add_u32 v6, s10, v{AK1}
    v_mov_b32 v{Q1}, 0
    v_mov_b32 v{Q1+1}, 0
    s_add_u32 s64, s64, 8192
    s_cmp_lt_u32 s{S_W}, 4
    s_cbranch_scc1 F_m3
    s_waitcnt vmcnt(0)
    F_m3:
    s_barrier
    ds_read_b128 {vr(Q0,4)}, v5
    s_mov_b32 exec_hi, 0
    ds_read_b64 {vr(Q1,2)}, v6
    s_mov_b32 exec_hi, -1
    ds_read_b128 {vr(K0,4)}, v{AK0}
    ds_read_b64 {vr(K1,2)}, v{AK1}
    s_add_u32 s28, s64, 8192
    buffer_load_dwordx2 v[114:115], v14, s[20:23], s64 offen sc1
    buffer_load_dwordx2 v[116:117], v14, s[20:23], s28 offen sc1
    s_waitcnt lgkmcnt(0)
    v_mfma_f32_32x32x16_bf16 {vr(SA,16)}, {vr(K0,4)}, {vr(Q0,4)}, 0
    v_mfma_f32_32x32x8_bf16 {vr(SA,16)}, {vr(K1,2)}, {vr(Q1,2)}, {vr(SA,16)}
    ds_read_b128 {vr(K0,4)}, v{AK0} offset:2560
    ds_read_b64 {vr(K1,2)}, v{AK1} offset:2560
    s_nop 6
    """)
    A(f"""
    s_nop 2
    v_max3_f32 v5, v{SA}, v{SA+1}, v{SA+2}
    v_max3_f32 v6, v{SA+3}, v{SA+4}, v{SA+5}
    v_max3_f32 v5, v5, v{SA+6}, v{SA+7}
    v_max3_f32 v6, v6, v{SA+8}, v{SA+9}
    v_max3_f32 v5, v5, v{SA+10}, v{SA+11}
    v_max3_f32 v6, v6, v{SA+12}, v{SA+13}
    v_max3_f32 v5, v5, v{SA+14}, v{SA+15}
    v_max_f32 v5, v5, v6
    v_mov_b32 v6, v5
    s_nop 1
    v_permlane32_swap_b32 v5, v6
    s_nop 1
    v_max_f32 v5, v5, v6
    """)
    for r in range(16): A(f"v_sub_f32 v{NEGM+r}, 0, v5")
    for r in range(16): A(f"v_sub_f32 v{SA+r}, v{SA+r}, v5")
    stamp(A, 2)
    def pk_load(j):
        def f():
            A(f"buffer_load_dwordx4 {vr(PK+4*j,4)}, v{L16}, s[20:23], s35 offen offset:{(j%4)*1024} sc1")
            if j % 4 == 3: A("s_add_u32 s35, s35, 4096")
            vm.op("pk")
        return f
    def wc_piece(j):
        def f():
            lab = None
            if j == 12:
                lab = A.label("F_wc")
                A(f"s_cmp_ge_u32 s{S_W}, 4")
                A(f"s_cbranch_scc1 {lab}")
            A(f"""
            s_mov_b32 m0, s67
            s_add_u32 s67, s67, 8192
            buffer_load_dwordx4 v{L16}, s[20:23], s68 offen sc1 lds
            s_add_u32 s68, s68, 8192
            """)
            if lab: A(f"{lab}:")
            else: vm.op("wc")
        return f
    def x_piece(i):
        def f():
            lab = None
            if i == 1:
                lab = A.label("F_xp")
                A(f"s_cmp_ge_u32 s{S_W}, 2")
                A(f"s_cbranch_scc1 {lab}")
            A(f"""
            s_lshl_b32 s10, s{S_W}, 10
            s_add_u32 m0, s10, {XL+8192*i}
            s_nop 0
            buffer_load_dwordx4 v{VO80+i}, s[12:15], s69 offen lds
            """)
            if lab: A(f"{lab}:")
            else: vm.op("x")
        return f
    def touch():
        A(f"""
        s_mov_b64 exec, 0x1ffffff
        buffer_load_dword v{JUNK}, v{TCH}, s[20:23], s36 offen sc1
        s_mov_b64 exec, -1
        """)
        vm.op("x")
    def kv_check():
        A(f"""
        s_mov_b32 s11, 0x40000
        s_waitcnt vmcnt(0)
        F_kc:
        v_cmp_ne_u64 vcc, s[{S_TAG}:{S_TAG+1}], v[114:115]
        s_mov_b64 s[16:17], vcc
        v_cmp_ne_u64 vcc, s[{S_TAG}:{S_TAG+1}], v[116:117]
        s_or_b64 s[16:17], s[16:17], vcc
        s_cbranch_scc0 F_ko
        buffer_load_dwordx2 v[114:115], v14, s[20:23], s64 offen sc1
        buffer_load_dwordx2 v[116:117], v14, s[20:23], s28 offen sc1
        s_sub_u32 s11, s11, 1
        s_waitcnt vmcnt(0)
        s_cmp_lg_u32 s11, 0
        s_cbranch_scc1 F_kc
        F_ko:
        """)
        kv_round()
    def fp_store():
        A(f"""
        s_cmp_lg_u32 s{S_W}, 0
        s_cbranch_scc1 F_nofp
        s_cmp_ge_u32 s2, 192
        s_cbranch_scc1 F_nofp
        s_lshl_b32 s10, s2, 7
        v_mov_b32 v116, s{S_TAG}
        v_mov_b32 v117, s{S_TAG+1}
        v_mov_b32 v118, s{S_XCC}
        v_mov_b32 v119, s10
        s_mov_b64 exec, 1
        buffer_store_dwordx4 v[116:119], v119, s[20:23], s50 offen sc1
        s_mov_b64 exec, -1
        F_nofp:
        """)
    def fp_load():
        A(f"buffer_load_dwordx2 v[114:115], v{TCH}, s[20:23], s51 offen sc1")
        vm.op("fp")
    def fp_check():
        A(f"""
        s_mov_b32 s11, 0x40000
        s_waitcnt vmcnt({vm.need('fp')})
        F_fpc:
        v_cmp_ne_u64 vcc, s[{S_TAG}:{S_TAG+1}], v[114:115]
        s_cbranch_vccz F_fpo
        buffer_load_dwordx2 v[114:115], v{TCH}, s[20:23], s51 offen sc1
        s_sub_u32 s11, s11, 1
        s_waitcnt vmcnt(0)
        s_cmp_lg_u32 s11, 0
        s_cbranch_scc1 F_fpc
        F_fpo:
        """)
    def xcc_load():
        A(f"""
        v_lshlrev_b32 v{XT}, 10, v3
        s_lshl_b32 s51, s{S_G}, 7
        s_add_u32 s51, s51, {FP}
        buffer_load_dwordx4 v[116:119], v{XT}, s[20:23], s51 offen sc1
        """)
        vm.op("xcc")
        A(f"v_and_b32 v5, 0x780, v{TCH}")
        A(f"buffer_load_dword v{JUNK}, v5, s[20:23], s{S_FL} offen sc1")
        vm.op("x")
    def we_touch():
        A(f"""
        s_lshl_b32 s10, s{S_RT4}, 3
        s_add_u32 s10, s10, s{S_W}
        s_mul_i32 s10, s10, 3840
        s_add_u32 s10, s10, s65
        s_mov_b64 exec, 0x3fffffff
        buffer_load_dword v{JUNK}, v{TCH}, s[20:23], s10 offen sc1
        s_mov_b64 exec, -1
        """)
        vm.op("x")
    def code_touch():
        lab = A.label("F_ct")
        A(f"""
        s_cmp_lg_u32 s{S_W}, 7
        s_cbranch_scc1 {lab}
        s_getpc_b64 s[10:11]
        F_ctpc:
        s_and_b32 s28, s{S_IDX}, 3
        s_lshl_b32 s28, s28, 13
        v_add_u32 v5, s28, v{TCH}
        v_min_u32 v5, F_kend-F_ctpc-4, v5
        global_load_dword v{JUNK}, v5, s[10:11]
        {lab}:
        """)
    jobs, jobs2 = {}, {}
    jobs[1] = kv_check
    jobs2[2] = kv_round
    jobs[2] = fp_store
    jobs[3] = kv_round
    for r in range(3, 18): jobs[2*(r-1)] = kv_round
    jobs[5] = fp_load
    jobs[9] = fp_check
    n = 10
    for j in range(30):
        jobs2[n] = pk_load(j); n += 2 if j < 15 else 1
    assert n <= 56, n
    for j in range(13): jobs[44+j] = wc_piece(j)
    jobs[33] = we_touch
    jobs[35] = xcc_load
    if 'jearly' in OPT:
        for j in range(13): del jobs[44+j]
        jobs[44] = x_piece(0)
        jobs[45] = x_piece(1)
        for j in range(13): jobs[46+j] = wc_piece(j)
        jobs[int(os.environ.get('TT', 41))] = touch
    else:
        jobs[57] = x_piece(0)
        jobs[58] = x_piece(1)
        jobs2[56] = touch
    bars = {6: "kv1", 12: "kv5", 24: "kv11", 44: "kvl"}
    baseK = 0; baseV = 0
    for n in range(64):
        S, Sn = (SA, SB) if n % 2 == 0 else (SB, SA)
        def ex(a, b):
            for r in range(a, b): A(f"v_exp_f32 v{S+r}, v{S+r}")
        def cv(P, a):
            for e in range(4): A(f"v_cvt_pk_bf16_f32 v{P+e}, v{S+a+2*e}, v{S+a+2*e+1}")
        if n in bars:
            A(f"s_waitcnt vmcnt({vm.since('kvl') if bars[n] == 'kvl' else vm.need(bars[n])})")
            A("s_barrier")
        A(f"s_setprio {3-(n%4)}")
        if 'attnst' in OPT and n % 8 == 0 and n > 0: asmlib.stamp(A, 3 + n//8)
        if 2560*n + 640 - baseV > 65000:
            A(f"v_add_u32 v{AV}, {2560*n-baseV}, v{AV}"); baseV = 2560*n
        if 2560*(n+2) - baseK > 65000:
            A(f"v_add_u32 v{AK0}, {2560*(n+2)-baseK}, v{AK0}")
            A(f"v_add_u32 v{AK1}, {2560*(n+2)-baseK}, v{AK1}"); baseK = 2560*(n+2)
        ex(0, 2)
        A(f"v_mfma_f32_32x32x16_bf16 {vr(O,16)}, {vr(V1,4)}, {vr(P1,4)}, {vr(O,16)}")
        A("s_mov_b64 exec, s[32:33]")
        A(f"ds_read_b128 {vr(V0,4)}, v{AV} offset:{2560*n-baseV}")
        A(f"ds_read_b128 {vr(V1,4)}, v{AV} offset:{2560*n-baseV+640}")
        A("s_mov_b64 exec, -1")
        if n in jobs2: jobs2[n]()
        ex(2, 7)
        if n < 63:
            A("s_waitcnt lgkmcnt(2)")
            A(f"v_mfma_f32_32x32x16_bf16 {vr(Sn,16)}, {vr(K0,4)}, {vr(Q0,4)}, {vr(NEGM,16)}")
        ex(7, 8)
        cv(P0, 0)
        ex(8, 10)
        if n < 63:
            A(f"v_mfma_f32_32x32x8_bf16 {vr(Sn,16)}, {vr(K1,2)}, {vr(Q1,2)}, {vr(Sn,16)}")
        if n < 62:
            A(f"ds_read_b128 {vr(K0,4)}, v{AK0} offset:{2560*(n+2)-baseK}")
            A(f"ds_read_b64 {vr(K1,2)}, v{AK1} offset:{2560*(n+2)-baseK}")
        if n in jobs: jobs[n]()
        ex(10, 15)
        A(f"s_waitcnt lgkmcnt({2 if n < 62 else 0})")
        A(f"v_mfma_f32_32x32x16_bf16 {vr(O,16)}, {vr(V0,4)}, {vr(P0,4)}, {vr(O,16)}")
        ex(15, 16)
        cv(P1, 8)
    A("s_setprio 0")
    A("s_nop 0")
    A(f"v_mfma_f32_32x32x16_bf16 {vr(O,16)}, {vr(V1,4)}, {vr(P1,4)}, {vr(O,16)}")
    stamp(A, 3)
    if 'attnst' in OPT:
        def stamp(A, i): pass
    est = (lambda i: asmlib.stamp(A, i)) if 'est' in OPT else (lambda i: None)
    if 'est' in OPT:
        def stamp(A, i):
            if i >= 8: asmlib.stamp(A, i)
    A(f"""
    v_lshrrev_b32 v5, 4, v3
    v_mul_u32_u24 v5, {20*1024}, v5
    v_and_b32 v6, 15, v3
    v_lshl_add_u32 v17, v6, 4, v5     ; (t>>4)*20480 + (t&15)*16
    v_lshl_add_u32 v16, v4, 8, v17    ; + h*256
    s_mul_i32 s44, s{S_QB}, {GRP_SZ}
    s_mul_i32 s10, s{S_W}, 40960
    s_add_u32 s44, s44, s10
    s_add_u32 s44, s44, {GRP+G_O}
    s_lshr_b32 s10, s{S_HD}, 1
    s_lshl_b32 s10, s10, 8
    s_and_b32 s11, s{S_HD}, 1
    s_lshl_b32 s11, s11, 3
    s_add_u32 s45, s10, s11
    s_add_u32 s45, s45, s44
    s_add_u32 s45, s45, 16384
    s_lshl_b32 s10, s{S_HD}, 9
    s_add_u32 s44, s44, s10
    ; run-time check of the stand-in max: row sum (>= 1) must stay far below overflow and the outputs finite
    v_add_f32 v6, abs(v{O}), abs(v{O+1})
    v_add_f32 v7, abs(v{O+2}), abs(v{O+3})
    v_add_f32 v6, v6, abs(v{O+4})
    v_add_f32 v7, v7, abs(v{O+5})
    v_add_f32 v6, v6, abs(v{O+6})
    v_add_f32 v7, v7, abs(v{O+7})
    v_add_f32 v6, v6, abs(v{O+8})
    v_add_f32 v7, v7, abs(v{O+9})
    v_add_f32 v6, v6, abs(v{O+10})
    v_add_f32 v7, v7, abs(v{O+11})
    v_add_f32 v6, v6, v7
    v_cmp_ngt_f32 vcc, {f32(2.0**64)}, v{O+12}
    s_mov_b64 s[10:11], vcc
    v_cmp_ngt_f32 vcc, {f32(2.0**126)}, v6
    s_or_b64 s[10:11], s[10:11], vcc
    s_cbranch_scc1 F_slow
    F_out:
    v_rcp_f32 v6, v{O+12}
    s_nop 0
    """)
    for r in range(12): A(f"v_mul_f32 v{O+r}, v{O+r}, v6")
    for e in range(6): A(f"v_cvt_pk_bf16_f32 v{O+e}, v{O+2*e}, v{O+2*e+1}")
    A(f"buffer_store_dwordx4 {vr(O,4)}, v16, s[20:23], s44 offen sc1")
    A("s_mov_b32 exec_hi, 0")
    A(f"buffer_store_dwordx2 {vr(O+4,2)}, v17, s[20:23], s45 offen sc1")
    A("s_mov_b32 exec_hi, -1")
    vm.op("o"); vm.op("o")
    A(f"""
    s_mov_b32 s11, 0x40000
    s_waitcnt vmcnt({vm.need('xcc')})
    F_xc:
    v_cmp_ne_u64 vcc, s[{S_TAG}:{S_TAG+1}], v[116:117]
    s_cbranch_vccz F_xc2
    buffer_load_dwordx4 v[116:119], v{XT}, s[20:23], s51 offen sc1
    s_sub_u32 s11, s11, 1
    s_waitcnt vmcnt(0)
    s_cmp_lg_u32 s11, 0
    s_cbranch_scc1 F_xc
    F_xc2:
    v_cmp_ne_u32 vcc, s{S_XCC}, v118
    s_mov_b32 s{S_MODE}, 0
    s_cbranch_vccz F_xc3
    s_mov_b32 s{S_MODE}, 1
    F_xc3:
    """)
    ACC, WF, AF, RA, XR = 8, 28, 68, 108, 110
    A(f"""
    s_lshr_b32 s60, s{S_CBK}, 2
    s_xor_b32 s60, s60, s{S_KH}
    s_mul_i32 s10, s60, 51200
    v_add_u32 v{RA}, s10, v{L16}
    s_mul_i32 s31, s{S_RT16}, 20480
    s_mul_i32 s11, s60, 10240
    s_add_u32 s31, s31, s11
    s_add_u32 s31, s31, s{S_GB}
    s_mov_b32 s28, 0x3f803f80
    """)
    stamp(A, 4)
    def rdC(k):
        b = WF + 20*(k & 1)
        for ct in range(5): A(f"ds_read_b128 {vr(b+4*ct,4)}, v{RA} offset:{k*5120+ct*1024}")
    A(f"""
    s_waitcnt vmcnt(0)
    s_barrier
    s_cmp_lg_u32 s{S_W}, 4
    s_cbranch_scc1 F_s1_o
    s_lshl_b32 s10, s{S_QB}, 12
    s_lshl_b32 s11, s{S_HD}, 7
    s_add_u32 s10, s10, s11
    s_add_u32 s10, s10, {FO}
    v_mov_b32 v6, s{S_TAG}
    v_mov_b32 v7, s{S_TAG+1}
    v_mov_b32 v5, 0
    s_mov_b64 exec, 1
    buffer_store_dwordx2 v[6:7], v5, s[20:23], s10 offen sc1
    s_mov_b64 exec, -1
    F_s1_o:
    """)
    rdC(0); rdC(1)
    A(f"""
    s_cmp_eq_u32 s{S_KH}, 0
    s_cbranch_scc1 F_s1_a
    v_and_b32 v5, 15, v2
    v_mul_u32_u24 v5, 160, v5
    v_lshrrev_b32 v6, 4, v2
    v_lshl_add_u32 v5, v6, 3, v5
    s_mul_i32 s10, s{S_RT}, 2560
    s_add_u32 s10, s10, {XL}
    v_add_u32 v5, s10, v5
    """)
    for ct in range(5): A(f"ds_read_b64 {vr(XR+2*ct,2)}, v5 offset:{32*ct}")
    A("s_waitcnt lgkmcnt(0)")
    for ct in range(5):
        a = ACC + 4*ct
        A(f"""
        v_lshlrev_b32 v{a}, 16, v{XR+2*ct}
        v_and_b32 v{a+1}, 0xffff0000, v{XR+2*ct}
        v_lshlrev_b32 v{a+2}, 16, v{XR+2*ct+1}
        v_and_b32 v{a+3}, 0xffff0000, v{XR+2*ct+1}
        """)
    A(f"""
    s_cmp_lg_u32 s{S_W}, 4
    s_cbranch_scc1 F_s1_done
    """)
    A(f"""
    v_lshlrev_b32 v5, 7, v3
    s_lshl_b32 s10, s{S_G}, 12
    s_add_u32 s10, s10, {FO}
    """)
    poll(A, "F_s1", 5, "s10", 0, acquire=False)
    A(f"""
    s_branch F_s1_done
    F_s1_a:
    v_mov_b32 v8, 0
    v_mov_b32 v9, 0
    v_mov_b32 v10, 0
    s_lshl_b32 s10, s{S_W}, 2
    s_add_u32 s10, s10, {CSP}
    v_lshl_add_u32 v7, v2, 4, s10
    """)
    for k in range(10):
        for d in range(4):
            for t in range(3):
                A(f"v_dot2c_f32_bf16 v{8+t}, s28, v{PK+12*k+4*t+d}")
    A("s_nop 2")
    for t in range(3): A(f"ds_write_b32 v7, v{8+t} offset:{1024*t}")
    A("s_waitcnt lgkmcnt(0)")
    for r in range(20): A(f"v_mov_b32 v{ACC+r}, 0")
    A("F_s1_done:")
    A("s_barrier")
    stamp(A, 5)
    for ks in range(10):
        A(f"buffer_load_dwordx4 {vr(AF+4*ks,4)}, v{L16}, s[20:23], s31 offen offset:{(ks%4)*1024} sc1")
        if ks % 4 == 3: A("s_add_u32 s31, s31, 4096")
    CSO = 104
    PT = 88
    A(f"""
    s_mul_i32 s10, s{S_RT}, 5120
    s_add_u32 s10, s10, {RED}
    v_add_u32 v1, s10, v{L16}
    """)
    def stepC(k):
        b = WF + 20*(k & 1)
        for ct in range(5):
            A(f"v_mfma_f32_16x16x32_bf16 {vr(ACC+4*ct,4)}, {vr(b+4*ct,4)}, {vr(AF+4*k,4)}, {vr(ACC+4*ct,4)}")
    for k in range(8):
        A(f"s_waitcnt vmcnt({9-k}) lgkmcnt(5)")
        stepC(k)
        rdC(k+2)
    A(f"s_cmp_eq_u32 s{S_KH}, 1")
    A("s_cbranch_scc1 F_cb")
    A("s_waitcnt vmcnt(1) lgkmcnt(5)")
    stepC(8)
    A("s_waitcnt vmcnt(0) lgkmcnt(0)")
    stepC(9)
    stamp(A, 6)
    A(f"""
    s_mul_i32 s10, s{S_W}, 30720
    v_add_u32 v7, s10, v{L16}
    v_add_u32 v6, {CSP}, v{L16}
    s_nop 4
    """)
    for ct in range(5): A(f"ds_write_b128 v1, {vr(ACC+4*ct,4)} offset:{1024*ct}")
    for t in range(3): A(f"ds_read_b128 {vr(WF+4*t,4)}, v6 offset:{1024*t}")
    A("s_waitcnt lgkmcnt(0)")
    A("s_barrier")
    A("s_mov_b32 s10, 0x07060302")
    for t in range(3):
        w = WF + 4*t
        A(f"""
        v_add_f32 v{w}, v{w}, v{w+1}
        v_add_f32 v{w+2}, v{w+2}, v{w+3}
        v_add_f32 v{w}, v{w}, v{w+2}
        v_and_b32 v6, 0xffff0000, v{w}
        v_sub_f32 v6, v{w}, v6
        v_perm_b32 v{CSO+2*t}, v6, v{w}, s10
        v_perm_b32 v{CSO+2*t+1}, v6, v{w}, s10
        """)
    ACCD, WFD, AFD, STT, RAD, GST = 8, 128, 164, 228, 111, 110
    A(f"""
    v_add_u32 v{RAD}, 61440, v{L16}
    s_mul_i32 s31, s{S_W}, 81920
    s_add_u32 s31, s31, {G_H}
    s_add_u32 s31, s31, s{S_GB}
    s_add_u32 s29, s31, 40960
    v_lshlrev_b32 v5, 3, v3
    v_lshl_add_u32 v1, v4, 13, v5         ; stats voffset: h*4*2048 + t*8
    s_lshl_b32 s30, s{S_W}, 9
    s_add_u32 s30, s30, {G_ST}
    s_add_u32 s30, s30, s{S_GB}
    s_lshl_b32 s48, s{S_W}, 8
    s_add_u32 s48, s48, s{S_FL}
    s_barrier
    """)
    for j in range(30): A(f"ds_write_b128 v7, {vr(PK+4*j,4)} offset:{1024*j}")
    stamp(A, 7)
    poll(A, "F_s2", L4, "s48", 0)
    A("s_waitcnt lgkmcnt(0)")
    NR = 8
    vm.clear()
    nld = [0]
    def ldA(i):
        k = nld[0]
        A(f"buffer_load_dwordx4 {vr(AFD+8*(k%NR)+4*i,4)}, v{L16}, s[20:23], s{31 if i == 0 else 29} offen offset:{(k%4)*1024} sc1")
        vm.op(f"a{k}_{i}")
        if i == 1:
            if k % 4 == 3:
                A("s_add_u32 s31, s31, 4096"); A("s_add_u32 s29, s29, 4096")
            nld[0] += 1
    def rdD(ks, t):
        b = WFD + 12*(ks % 3)
        if ks < 20: A(f"ds_read_b128 {vr(b+4*t,4)}, v{L16} offset:{ks*3072+t*1024}")
        else:       A(f"ds_read_b128 {vr(b+4*t,4)}, v{RAD} offset:{(ks-20)*3072+t*1024}")
    for k in range(4): ldA(0); ldA(1)
    A("s_barrier")
    stamp(A, 8)
    for k in range(2):
        for t in range(3): rdD(k, t)
    c1 = -2.0*math.sqrt(2/math.pi)*math.log2(math.e)
    c3 = c1*0.044715
    stl = []
    for i in range(2):
        for c in range(4):
            so = "s30" if c < 2 else "s46"
            stl.append(f"buffer_load_dwordx2 {vr(STT+8*i+2*c,2)}, v1, s[20:23], {so} offen offset:{2048*(c&1)+256*i} sc1")
    A("s_add_u32 s46, s30, 4096")
    side = ""
    for i in range(2):
        S_ = STT + 8*i
        side += f"""
        v_add_f32 v{S_}, v{S_}, v{S_+2}
        v_add_f32 v{S_+1}, v{S_+1}, v{S_+3}
        v_add_f32 v{S_+4}, v{S_+4}, v{S_+6}
        v_add_f32 v{S_+5}, v{S_+5}, v{S_+7}
        v_add_f32 v{S_}, v{S_}, v{S_+4}
        v_add_f32 v{S_+1}, v{S_+1}, v{S_+5}
        v_mov_b32 v{S_+2}, v{S_}
        v_mov_b32 v{S_+3}, v{S_+1}
        s_nop 1
        v_permlane32_swap_b32 v{S_}, v{S_+2}
        v_permlane32_swap_b32 v{S_+1}, v{S_+3}
        s_nop 1
        v_add_f32 v{S_}, v{S_}, v{S_+2}
        v_add_f32 v{S_+1}, v{S_+1}, v{S_+3}
        v_mul_f32 v{S_}, {f32(-1/640)}, v{S_}
        v_mul_f32 v{S_+1}, {f32(1/640)}, v{S_+1}
        v_fma_f32 v{S_+1}, -v{S_}, v{S_}, v{S_+1}
        v_max_f32 v{S_+1}, 0, v{S_+1}
        v_add_f32 v{S_+2}, {f32(EPS)}, v{S_+1}
        v_rsq_f32 v{S_+1}, v{S_+2}
        s_mov_b32 s11, 0x03020302
        v_and_b32 v5, 0xffff0000, v{S_}
        v_sub_f32 v5, v{S_}, v5
        v_perm_b32 v{S_+6}, v{S_}, v{S_}, s11
        v_perm_b32 v{S_+7}, v5, v5, s11
        v_mul_f32 v{S_+4}, {f32(c1)}, v{S_+1}
        v_mul_f32 v{S_+5}, v{S_+1}, v{S_+1}
        v_mul_f32 v{S_+5}, v{S_+5}, v{S_+1}
        v_mul_f32 v{S_+5}, {f32(c3)}, v{S_+5}
        """
    side += f"""
    v_and_b32 v5, 15, v2
    v_lshlrev_b32 v5, 4, v5
    v_lshl_add_u32 v5, v4, 8, v5
    v_bfe_u32 v6, v2, 4, 1
    v_mul_u32_u24 v6, 49152, v6
    v_add_u32 v{GST}, v5, v6
    s_mul_i32 s46, s{S_W}, {2*98304}
    s_mul_i32 s11, s{S_IDX}, 1536
    s_add_u32 s46, s46, s11
    s_add_u32 s46, s46, {G_G}
    s_add_u32 s46, s46, s{S_GB}
    s_add_u32 s47, s46, 98304
    """
    side = [l.strip() for l in side.split("\n") if l.strip()]
    for ks in range(40):
        b = WFD + 12*(ks % 3)
        for i in range(2):
            a = AFD + 8*(ks % NR) + 4*i
            lg = f" lgkmcnt({3 if ks < 39 else 0})" if i == 0 else ""
            A(f"s_waitcnt vmcnt({vm.need(f'a{ks}_{i}')}){lg}")
            for t in range(3):
                acc = vr(ACCD+48*i+16*t, 16)
                A(f"v_mfma_f32_32x32x16_bf16 {acc}, {vr(b+4*t,4)}, {vr(a,4)}, {'0' if ks == 0 else acc}")
                if i == 0 and ks + 2 < 40: rdD(ks+2, t)
                if i == 1:
                    lim = min(40, ks + NR - 1 + 0)
                    if t < 2 and nld[0] < lim: ldA(t)
                    if t == 2:
                        if ks < 4 and nld[0] < lim: ldA(0); ldA(1)
                        elif 4 <= ks < 12: A(stl.pop(0)); vm.op("st")
                if ks >= 20:
                    if side: A(side.pop(0))
        if ks == 36:
            assert not side
            for i in range(2):
                for t in range(3):
                    acc = vr(ACCD+48*i+16*t, 16)
                    A(f"v_mfma_f32_32x32x8_bf16 {acc}, {vr(CSO+2*t,2)}, {vr(STT+8*i+6,2)}, {acc}")
    assert nld[0] == 40
    stamp(A, 9)
    A("s_barrier")
    A("s_nop 6")
    E = WFD
    for i in range(2):
        AA = vr(STT+8*i+4, 2); IA = vr(STT+8*i+2, 2)
        for t in range(3):
            g = ACCD + 48*i + 16*t; u = g + 8
            R4 = range(0, 8, 2)
            for e in R4: A(f"v_pk_mul_f32 {vr(E+e,2)}, {vr(g+e,2)}, {vr(g+e,2)}")
            for e in R4: A(f"v_pk_fma_f32 {vr(E+e,2)}, {vr(E+e,2)}, {AA}, {AA} op_sel:[0,1,0] op_sel_hi:[1,1,0]")
            for e in R4: A(f"v_pk_mul_f32 {vr(E+e,2)}, {vr(E+e,2)}, {vr(g+e,2)}")
            for e in range(8): A(f"v_exp_f32 v{E+e}, v{E+e}")
            for e in R4: A(f"v_pk_mul_f32 {vr(g+e,2)}, {vr(g+e,2)}, {vr(u+e,2)}")
            for e in R4: A(f"v_pk_fma_f32 {vr(E+e,2)}, {vr(E+e,2)}, {IA}, {IA} op_sel_hi:[1,0,0]")
            for e in range(8): A(f"v_rcp_f32 v{E+e}, v{E+e}")
            A("s_nop 0")
            for e in R4: A(f"v_pk_mul_f32 {vr(g+e,2)}, {vr(g+e,2)}, {vr(E+e,2)}")
            for e in range(4): A(f"v_cvt_pk_bf16_f32 v{u+e}, v{g+2*e}, v{g+2*e+1}")
            A(f"buffer_store_dwordx4 {vr(u,4)}, v{GST}, s[20:23], s{46+i} offen offset:{512*t}")
    stamp(A, 10)
    def e_setup():
        for i in range(4):
            A(f"""
            s_add_u32 s10, s{S_RT}, {i}
            s_and_b32 s10, s10, 3
            s_mul_i32 s{44+i}, s10, 5120
            s_lshl_b32 s11, s{S_RT4}, 2
            s_add_u32 s10, s10, s11
            s_mul_i32 s10, s10, 49152
            s_mul_i32 s11, s{S_W}, 6144
            s_add_u32 s10, s10, s11
            s_add_u32 s{28+i}, s10, s{S_GB}
            """)
        A(f"""
        v_and_b32 v7, 15, v2
        v_mul_u32_u24 v7, 320, v7
        v_lshrrev_b32 v5, 4, v2
        v_bfe_u32 v6, v2, 1, 2
        v_xor_b32 v5, v5, v6
        v_lshl_add_u32 v7, v5, 4, v7
        s_mul_i32 s10, s{S_W}, 20480
        v_add_u32 v7, s10, v7
        """)
        for i in range(4): A(f"v_add_u32 v{WA+i}, s{44+i}, v7")
        for rnd in range(3):
            A(f"""
            v_add_u32 v5, {512*rnd}, v0
            v_mul_u32_u24 v6, 3277, v5
            v_lshrrev_b32 v6, 16, v6
            v_mul_u32_u24 v7, 20, v6
            v_sub_u32 v5, v5, v7
            v_bfe_u32 v1, v6, 1, 2
            v_xor_b32 v1, v1, v5
            v_mul_u32_u24 v7, 320, v6
            v_lshl_add_u32 v{IL+rnd}, v1, 4, v7
            v_mul_u32_u24 v7, 1280, v6
            v_lshl_add_u32 v{OA+rnd}, v5, 3, v7
            """)
    ACE, AR, WA, IL, OA = 8, 48, 248, 252, 121
    A(f"""
    s_mul_i32 s10, s{S_W}, 10240
    s_add_u32 s10, s10, {RED}
    v_add_u32 v7, s10, v{L16}
    s_lshl_b32 s10, s{S_IDX}, 3
    s_add_u32 s48, s48, s10
    s_add_u32 s48, s48, 1024
    s_mul_i32 s10, s{S_W}, 30720
    s_add_u32 s65, s65, s10
    s_add_u32 s65, s65, 20480
    """)
    for j in range(10): A(f"ds_read_b128 {vr(PK+4*j,4)}, v7 offset:{1024*j}")
    signal(A, "F_g3", "s48")
    for j in range(20, 30 if NBR == 0 else 20):
        A(f"buffer_load_dwordx4 {vr(PK+4*j,4)}, v{L16}, s[20:23], s65 offen offset:{(j%4)*1024}")
        if j % 4 == 3: A("s_add_u32 s65, s65, 4096")
    for r in range(20): A(f"v_mov_b32 v{8+r}, 0")
    e_setup()
    A(f"""
    s_mul_i32 s10, s{S_W}, 20480
    v_add_u32 v7, s10, v{L16}
    s_waitcnt lgkmcnt(0)
    s_barrier
    """)
    for j in range(10, 20 if NBR == 0 else 30):
        A(f"ds_read_b128 {vr(PK+4*j,4)}, v7 offset:{1024*(j-10)}")
    A("s_branch F_e")
    A("F_cb:")
    A("s_barrier")
    for ct in range(5): A(f"ds_read_b128 {vr(AF+4*ct,4)}, v1 offset:{1024*ct}")
    A("s_waitcnt vmcnt(1) lgkmcnt(10)")
    stepC(8)
    A("s_waitcnt vmcnt(0) lgkmcnt(5)")
    stepC(9)
    stamp(A, 6)
    SV = AF + 20
    A(f"""
    s_barrier
    s_lshr_b32 s10, s{S_RT16}, 1
    s_mul_i32 s10, s10, 40
    s_mul_i32 s11, s{S_CBK}, 5
    s_add_u32 s10, s10, s11
    s_lshl_b32 s10, s10, 10
    s_add_u32 s10, s10, {G_H}
    s_add_u32 s10, s10, s{S_GB}
    s_and_b32 s11, s{S_RT16}, 1
    s_lshl_b32 s11, s11, 8
    s_add_u32 s10, s10, s11
    s_add_u32 s11, s10, 4096
    v_and_b32 v5, 15, v2
    v_lshlrev_b32 v7, 4, v5
    v_lshl_add_u32 v7, v4, 9, v7
    v_bfe_u32 v6, v2, 4, 1
    v_lshl_add_u32 v7, v6, 3, v7
    s_waitcnt lgkmcnt(0)
    """)
    for ct in range(5):
        a = ACC + 4*ct
        A(f"v_pk_add_f32 {vr(a,2)}, {vr(a,2)}, {vr(AF+4*ct,2)}")
        A(f"v_pk_add_f32 {vr(a+2,2)}, {vr(a+2,2)}, {vr(AF+4*ct+2,2)}")
        A(f"v_cvt_pk_bf16_f32 v{XR+2*ct}, v{a}, v{a+1}")
        A(f"v_cvt_pk_bf16_f32 v{XR+2*ct+1}, v{a+2}, v{a+3}")
        if ct < 4: A(f"buffer_store_dwordx2 {vr(XR+2*ct,2)}, v7, s[20:23], s10 offen offset:{1024*ct}")
        else:      A(f"buffer_store_dwordx2 {vr(XR+2*ct,2)}, v7, s[20:23], s11 offen")
    A(f"""
    v_mov_b32 v{SV+1}, 0
    v_mov_b32 v{SV+2}, 0
    v_lshlrev_b32 v5, 3, v5
    v_lshl_add_u32 v{SV}, v4, 2, v5       ; stats voffset: row*8 + (lane>>5)*4
    s_lshl_b32 s31, s{S_CBK}, 11
    s_lshl_b32 s29, s{S_RT16}, 7
    s_add_u32 s31, s31, s29
    s_add_u32 s31, s31, {G_ST}
    s_add_u32 s31, s31, s{S_GB}
    """)
    for e in range(10):
        A(f"v_dot2c_f32_bf16 v{SV+1}, s28, v{XR+e}")
        A(f"v_dot2c_f32_bf16 v{SV+2}, v{XR+e}, v{XR+e}")
    A(f"""
    s_lshl_b32 s48, s{S_RT4}, 8
    s_add_u32 s48, s48, s{S_FL}
    s_lshl_b32 s10, s{S_CBK}, 5
    s_lshl_b32 s11, s{S_RT}, 3
    v_permlane32_swap_b32 v{SV+1}, v{SV+2}
    s_add_u32 s10, s10, s11
    s_add_u32 s10, s10, s48
    v_add_f32 v{SV+1}, v{SV+1}, v{SV+2}
    v_mov_b32 v{SV+2}, v{SV+1}
    s_nop 0
    s_nop 0
    v_permlane16_swap_b32 v{SV+1}, v{SV+2}
    s_nop 1
    v_add_f32 v{SV+1}, v{SV+1}, v{SV+2}
    buffer_store_dword v{SV+1}, v{SV}, s[20:23], s31 offen
    """)
    for e in range(10):
        A(f"v_lshlrev_b32 v{ACC+2*e}, 16, v{XR+e}")
        A(f"v_and_b32 v{ACC+2*e+1}, 0xffff0000, v{XR+e}")
    signal(A, "F_g2", "s10")
    stamp(A, 7)
    e_setup()
    A("s_barrier")
    stamp(A, 8)
    A(f"""
    s_mul_i32 s10, s{S_RT}, 30720
    s_add_u32 s65, s65, s10
    s_mul_i32 s67, s{S_RT}, 10240
    s_add_u32 s67, s67, {RED}
    s_mov_b32 s49, {1 if 'nob1' in OPT else 10}
    """)
    if 'wb2' in OPT:
        A(f"""
        s_lshl_b32 s10, s{S_IDX}, 3
        s_add_u32 s10, s10, s{S_W}
        s_cmp_lg_u32 s10, 7
        s_cbranch_scc1 F_nowb2
        buffer_wbl2 sc1
        F_nowb2:
        """)
    A(f"""
    F_b1:
    s_mov_b32 m0, s67
    s_add_u32 s67, s67, 1024
    buffer_load_dwordx4 v{L16}, s[20:23], s65 offen sc1 lds
    s_add_u32 s65, s65, 1024
    s_sub_u32 s49, s49, 1
    s_cmp_lg_u32 s49, 0
    s_waitcnt vmcnt({BIF})
    s_cbranch_scc1 F_b1
    s_mul_i32 s67, s{S_RT}, 20480
    s_mov_b32 s49, 5
    v_add_u32 v7, s67, v{L16}
    s_add_u32 s50, s65, {1024*(20-NBR)}
    """)
    for j in range(NBR):
        A(f"buffer_load_dwordx4 {vr(28+4*j,4)}, v{L16}, s[20:23], s50 offen offset:{(j%4)*1024} sc1")
        if j % 4 == 3: A("s_add_u32 s50, s50, 4096")
        A(f"s_waitcnt vmcnt({BIF})")
    A("s_waitcnt vmcnt(0)")
    stamp(A, 9)
    A("s_barrier")
    if NBR < 20:
        A(f"""
        F_b2:
        s_mov_b32 m0, s67
        s_add_u32 s67, s67, 2048
        buffer_load_dwordx4 v{L16}, s[20:23], s65 offen sc1 lds
        buffer_load_dwordx4 v{L16}, s[20:23], s65 offen offset:1024 sc1 lds
        s_add_u32 s65, s65, 2048
        s_sub_u32 s49, s49, 1
        s_cmp_lg_u32 s49, 0
        s_waitcnt vmcnt(2)
        s_cbranch_scc1 F_b2
        """)
    for j in range(NBR): A(f"ds_write_b128 v7, {vr(28+4*j,4)} offset:{1024*(20-NBR+j)}")
    A("s_waitcnt vmcnt(0) lgkmcnt(0)")
    stamp(A, 10)
    A(f"""
    s_setprio 1
    s_cmp_lg_u32 s{S_W}, 4
    s_cbranch_scc1 F_s3_done
    """)
    poll(A, "F_s3", L4, "s48", 1024)
    A("F_s3_done:")
    A("s_barrier")
    A("F_e:")
    stamp(A, 11)
    if 'wb3' in OPT:
        A(f"""
        s_lshl_b32 s10, s{S_IDX}, 3
        s_add_u32 s10, s10, s{S_W}
        s_cmp_lg_u32 s10, 0
        s_cbranch_scc1 F_nowb
        buffer_wbl2 sc1
        F_nowb:
        """)
    vm.clear()
    NE = 18
    nle = [0]
    def ldE():
        n = nle[0]
        if n >= 24: return
        rt, s_ = divmod(n, 6)
        if s_ == 4: A(f"s_add_u32 s{28+rt}, s{28+rt}, 4096")
        A(f"buffer_load_dwordx4 {vr(AR+4*(n%NE),4)}, v{L16}, s[20:23], s{28+rt} offen offset:{(s_%4)*1024} sc1")
        vm.op(f"a{n}"); nle[0] += 1
    for _ in range(6): ldE()
    A("s_waitcnt lgkmcnt(0)")
    est(4)
    pend = []
    for n in range(24):
        rt, s_ = divmod(n, 6)
        A(f"s_waitcnt vmcnt({vm.need(f'a{n}')})")
        for ct in range(5):
            acc = vr(ACE + 20*(rt & 1) + 4*ct, 4)
            c = "0" if (s_ == 0 and rt > 0) else acc
            A(f"v_mfma_f32_16x16x32_bf16 {acc}, {vr(PK+20*s_+4*ct,4)}, {vr(AR+4*(n%NE),4)}, {c}")
            if ct == 1 and nle[0] < n + NE: ldE()
            if ct == 3 and n < 8 and nle[0] < n + NE: ldE()
            if ct == 4 and pend and s_ >= 1: A(pend.pop(0))
        if s_ == 5:
            pend = [f"ds_write_b128 v{WA+rt}, {vr(ACE+20*(rt&1)+4*ct,4)} offset:{64*ct}" for ct in range(5)]
    est(5)
    A("s_setprio 0")
    for rnd in range(3):
        A(f"v_add_u32 v{AR+2*rnd}, 61440, v{IL+rnd}")
        A(f"v_add_u32 v{AR+2*rnd+1}, 122880, v{IL+rnd}")
    A("s_nop 1")
    for p_ in pend: A(p_)
    A("s_waitcnt lgkmcnt(0)")
    est(6)
    A("s_barrier")
    est(7)
    def fin_read(rnd):
        b = 128 + 32*rnd
        for p in range(8):
            ad = (IL+rnd, AR+2*rnd, AR+2*rnd+1)[p//3]
            A(f"ds_read_b128 {vr(b+4*p,4)}, v{ad} offset:{20480*(p%3)}")
    def fin_sum(rnd):
        b = 128 + 32*rnd
        for st_ in (16, 8, 4):
            for o in range(0, st_, 2):
                A(f"v_pk_add_f32 {vr(b+o,2)}, {vr(b+o,2)}, {vr(b+st_+o,2)}")
        A(f"""
        v_cvt_pk_bf16_f32 v{b}, v{b}, v{b+1}
        v_cvt_pk_bf16_f32 v{b+1}, v{b+2}, v{b+3}
        buffer_store_dwordx2 {vr(b,2)}, v{OA+rnd}, s[40:43], s69 offen {'sc1' if 'osc1' in OPT else 'nt' if 'ont' in OPT else ''}
        """)
    fin_read(0)
    A("s_waitcnt lgkmcnt(1)")
    fin_read(1)
    A("s_waitcnt lgkmcnt(8)")
    fin_sum(0)
    A(f"s_cmp_ge_u32 s{S_W}, 4")
    A("s_cbranch_scc1 F_f1")
    A("s_waitcnt lgkmcnt(1)")
    fin_read(2)
    A("s_waitcnt lgkmcnt(8)")
    fin_sum(1)
    A("s_waitcnt lgkmcnt(0)")
    fin_sum(2)
    A("s_branch F_fin")
    A("F_f1:")
    A("s_waitcnt lgkmcnt(0)")
    fin_sum(1)
    A("F_fin:")
    if asmlib.STAMPS:
        A("s_waitcnt vmcnt(0)")
        asmlib.stamp(A, 1)
    stamp_flush(A, 1, 12)
    A("F_end:")
    A("s_endpgm")
    A("F_slow:")
    KS0, KS1 = 44, 20
    A(f"""
    v_lshlrev_b32 v{AK1}, 3, v3
    v_add_u32 v{AK1}, 1024, v{AK1}
    v_subrev_u32 v{AV}, {baseV}, v{AV}
    v_mov_b32 v5, 0xff800000
    s_mov_b32 s31, 0
    s_mov_b32 s10, s29
    """)
    for r in range(16): A(f"v_mov_b32 v{O+r}, 0")
    A("F_sloop:")
    A(f"""
    buffer_load_dwordx4 {vr(KS0,4)}, v{L16}, s[20:23], s10 offen sc1
    buffer_load_dwordx2 {vr(KS1,2)}, v{AK1}, s[20:23], s10 offen sc1
    s_mov_b64 exec, s[32:33]
    buffer_load_dwordx4 {vr(V0,4)}, v{AV}, s[20:23], s10 offen sc1
    buffer_load_dwordx4 {vr(V1,4)}, v{AV}, s[20:23], s10 offen offset:640 sc1
    s_mov_b64 exec, -1
    s_waitcnt vmcnt(0)
    v_mfma_f32_32x32x16_bf16 {vr(SA,16)}, {vr(KS0,4)}, {vr(Q0,4)}, 0
    v_mfma_f32_32x32x8_bf16 {vr(SA,16)}, {vr(KS1,2)}, {vr(Q1,2)}, {vr(SA,16)}
    s_nop 11
    v_max3_f32 v6, v{SA}, v{SA+1}, v5
    """)
    for r in range(2, 16, 2): A(f"v_max3_f32 v6, v{SA+r}, v{SA+r+1}, v6")
    A(f"""
    v_mov_b32 v7, v6
    s_nop 1
    v_permlane32_swap_b32 v6, v7
    s_nop 1
    v_max_f32 v6, v6, v7
    v_sub_f32 v7, v5, v6
    v_exp_f32 v7, v7
    v_mov_b32 v5, v6
    """)
    for r in range(16): A(f"v_mul_f32 v{O+r}, v{O+r}, v7")
    for r in range(16): A(f"v_sub_f32 v{SA+r}, v{SA+r}, v6")
    for r in range(16): A(f"v_exp_f32 v{SA+r}, v{SA+r}")
    A("s_nop 0")
    for e in range(8): A(f"v_cvt_pk_bf16_f32 v{P0+e}, v{SA+2*e}, v{SA+2*e+1}")
    A(f"""
    s_nop 1
    v_mfma_f32_32x32x16_bf16 {vr(O,16)}, {vr(V0,4)}, {vr(P0,4)}, {vr(O,16)}
    v_mfma_f32_32x32x16_bf16 {vr(O,16)}, {vr(V1,4)}, {vr(P1,4)}, {vr(O,16)}
    s_add_u32 s10, s10, 2560
    s_add_u32 s31, s31, 1
    s_cmp_lt_u32 s31, 64
    s_nop 8
    s_cbranch_scc1 F_sloop
    s_nop 3
    s_branch F_out
    F_kend:
    """)
    return dict(name=name, grid=256, block=512, lds=163840, nvgpr=256)
```

```python
from asmlib import *
import asmlib
from layout import *
from main2 import VM, S_TAG
import os
OPT = set(os.environ.get('OPT','').split(','))

def gen_phase_a(A):
    NST, STG = 4, 36864
    TAB = NST * STG
    stamp_rt(A,0); stamp(A,0)
    A(f"""
    s_cmp_ge_u32 s2, 256
    s_cbranch_scc1 F_end
    s_load_dwordx4 s[4:7], s[0:1], 0
    s_load_dwordx4 s[60:63], s[0:1], 64
    s_getpc_b64 s[10:11]
    A_pc:
    s_lshr_b32 s3, s2, 3
    s_lshl_b32 s3, s3, 11
    v_lshlrev_b32 v1, 7, v0
    v_add_u32 v1, s3, v1
    v_min_u32 v1, F_kend-A_pc-4, v1
    v_cmp_gt_u32 vcc, 16, v0
    s_and_saveexec_b64 s[12:13], vcc
    s_cbranch_execz A_nopf
    global_load_dword v255, v1, s[10:11]
    A_nopf:
    s_mov_b64 exec, s[12:13]
    v_lshrrev_b32 v1, 6, v0
    v_and_b32 v2, 63, v0              ; lane
    s_and_b32 s3, s2, 7
    v_readfirstlane_b32 s24, v1       ; wave
    s_lshr_b32 s10, s2, 3
    s_and_b32 s11, s10, 3             ; r
    s_lshr_b32 s10, s10, 2            ; c
    s_lshr_b32 s27, s3, 1
    s_lshl_b32 s27, s27, 2
    s_add_u32 s27, s27, s11           ; rb
    s_and_b32 s28, s3, 1
    s_mul_i32 s28, s28, 6
    s_add_u32 s28, s28, s10           ; cb
    v_and_b32 v3, 31, v2              ; t
    v_lshrrev_b32 v4, 5, v2           ; h
    s_mov_b32 s22, {WS_USED}
    s_mov_b32 s23, 0x20000
    s_mov_b32 s14, {2048*640*2}
    s_mov_b32 s15, 0x20000
    s_mov_b32 s18, {640*1920*2}
    s_mov_b32 s19, 0x20000
    s_sub_u32 s25, s24, 4             ; lw
    s_cmp_ge_u32 s10, 6
    s_cbranch_scc1 A_pack
    s_cmp_lt_u32 s24, 4
    s_cbranch_scc1 A_comp
    s_mul_i32 s31, s11, 15
    s_mul_i32 s10, s10, 10
    s_add_u32 s31, s31, s10
    s_mul_i32 s31, s31, 43
    s_lshr_b32 s31, s31, 8            ; (15r + 10c)/6
    s_sub_u32 s11, s31, 10
    s_cmp_ge_u32 s31, 10
    s_cselect_b32 s31, s11, s31
    s_lshl_b32 s29, s27, 7
    s_lshl_b32 s11, s25, 5
    s_add_u32 s29, s29, s11
    s_mul_i32 s29, s29, 1280
    s_mul_i32 s30, s25, {16*3840}
    s_mul_i32 s11, s28, 320
    s_add_u32 s30, s30, s11
    s_lshl_b32 s33, s25, 12
    s_lshl_b32 s32, s25, 10
    s_add_u32 s32, s32, 16384
    v_lshrrev_b32 v17, 3, v2
    v_mul_u32_u24 v5, 1280, v17
    v_lshrrev_b32 v17, 4, v2
    v_and_b32 v6, 7, v2
    v_xor_b32 v6, v6, v17
    v_lshl_add_u32 v8, v6, 4, v5
    v_xor_b32 v6, 4, v6
    v_lshl_add_u32 v9, v6, 4, v5
    v_add_u32 v9, {8*1280-1024}, v9
    v_add_u32 v10, {16*1280-2048}, v8
    v_add_u32 v11, {16*1280-2048}, v9
    """)
    for i in range(5):
        A(f"""
        v_add_u32 v5, {64*i}, v2
        v_mul_u32_u24 v6, 205, v5
        v_lshrrev_b32 v6, 12, v6
        v_mul_u32_u24 v7, 20, v6
        v_sub_u32 v5, v5, v7
        v_mul_u32_u24 v6, 3840, v6
        v_lshl_add_u32 v{12+i}, v5, 4, v6
        """)
        if 0 < i < 4: A(f"v_subrev_u32 v{12+i}, {1024*i}, v{12+i}")
    A(f"""
    s_waitcnt lgkmcnt(0)
    s_mov_b32 s12, s4
    s_mov_b32 s13, s5
    s_mov_b32 s16, s6
    s_mov_b32 s17, s7
    s_mov_b32 s20, s62
    s_mov_b32 s21, s63
    s_branch A_l0
    A_dma:
    s_lshl_b32 s10, s31, 7
    s_add_u32 s10, s10, s29
    s_mul_i32 s11, s31, {64*3840}
    s_mov_b32 m0, s33
    s_add_u32 s11, s11, s30
    buffer_load_dwordx4 v8, s[12:15], s10 offen lds
    buffer_load_dwordx4 v9, s[12:15], s10 offen offset:1024 lds
    buffer_load_dwordx4 v10, s[12:15], s10 offen offset:2048 lds
    buffer_load_dwordx4 v11, s[12:15], s10 offen offset:3072 lds
    s_add_u32 m0, s33, s32
    s_add_u32 s31, s31, 1
    buffer_load_dwordx4 v12, s[16:19], s11 offen lds
    buffer_load_dwordx4 v13, s[16:19], s11 offen offset:1024 lds
    buffer_load_dwordx4 v14, s[16:19], s11 offen offset:2048 lds
    buffer_load_dwordx4 v15, s[16:19], s11 offen offset:3072 lds
    s_add_u32 m0, m0, 4096
    s_cmp_eq_u32 s31, 10
    buffer_load_dwordx4 v16, s[16:19], s11 offen lds
    s_cselect_b32 s31, 0, s31
    s_add_u32 s33, s33, {STG}
    s_sub_u32 s10, s33, {NST*STG}
    s_cmp_ge_u32 s33, {NST*STG}
    s_cselect_b32 s33, s10, s33
    s_setpc_b64 s[34:35]
    A_l0:
    """)
    vm = VM()
    def dma(c):
        A("s_call_b64 s[34:35], A_dma")
        for _ in range(9): vm.op(f"c{c}")
    def stats_load():
        A(f"""
        s_lshl_b32 s36, s2, 2
        s_add_u32 s36, s36, s25
        s_mul_i32 s37, s36, 2560
        v_mul_u32_u24 v5, 1280, v4
        v_lshl_add_u32 v5, v3, 4, v5
        v_cmp_gt_u32 vcc, 16, v3
        v_mov_b32 v6, 0x40000000
        buffer_load_dwordx4 v[32:35], v5, s[12:15], s37 offen
        v_cndmask_b32 v6, v6, v5, vcc
        buffer_load_dwordx4 v[36:39], v5, s[12:15], s37 offen offset:512
        buffer_load_dwordx4 v[40:43], v6, s[12:15], s37 offen offset:1024
        """)
    def stats_calc():
        A("s_mov_b32 s38, 0x3f803f80")
        A("v_mov_b32 v20, 0")
        A("v_mov_b32 v21, 0")
        for d in range(12):
            A(f"v_dot2c_f32_bf16 v20, s38, v{32+d}")
            A(f"v_dot2c_f32_bf16 v21, v{32+d}, v{32+d}")
        A("s_nop 3")
        for m in ("quad_perm:[1,0,3,2]", "quad_perm:[2,3,0,1]", "row_half_mirror", "row_mirror"):
            A(f"v_add_f32_dpp v20, v20, v20 {m} row_mask:0xf bank_mask:0xf")
            A(f"v_add_f32_dpp v21, v21, v21 {m} row_mask:0xf bank_mask:0xf")
            A("s_nop 1")
        A(f"""
        v_mov_b32 v22, v20
        v_mov_b32 v23, v21
        s_nop 1
        v_permlane16_swap_b32 v20, v22
        v_permlane16_swap_b32 v21, v23
        s_nop 1
        v_add_f32 v20, v20, v22
        v_add_f32 v21, v21, v23
        v_mul_f32 v20, {f32(1/640)}, v20
        v_mul_f32 v21, {f32(1/640)}, v21
        v_fma_f32 v21, -v20, v20, v21
        v_max_f32 v21, 0, v21
        v_add_f32 v21, {f32(EPS)}, v21
        v_rsq_f32 v22, v21
        s_lshl_b32 s36, s36, 5
        s_add_u32 s36, s36, {RS}
        v_lshlrev_b32 v5, 4, v4
        v_mul_f32 v23, v20, v22
        v_sub_f32 v23, 0, v23
        s_mov_b32 exec_lo, 1
        s_mov_b32 exec_hi, 1
        buffer_store_dwordx4 v[22:25], v5, s[20:23], s36 offen sc1
        s_mov_b64 exec, -1
        """)
    def dbg_srd(lab):
        A(f"""
        s_mov_b32 s56, s60
        s_mov_b32 s57, s61
        s_mov_b32 s58, 256
        s_mov_b32 s59, 0x20000
        v_mov_b32 v18, 0
        """)
        if lab:
            A(f"""
            s_cmp_lg_u32 s2, 0
            s_cbranch_scc1 {lab}
            s_cmp_lg_u32 s24, 4
            s_cbranch_scc1 {lab}
            s_memrealtime s[10:11]
            s_waitcnt lgkmcnt(0)
            s_or_b32 s11, s11, 0x80000000
            v_mov_b32 v24, s10
            v_mov_b32 v25, s11
            v_mov_b32 v26, 0
            v_mov_b32 v27, 0
            s_mov_b64 exec, 1
            buffer_atomic_cmpswap_x2 v[24:27], v18, s[56:59], 0 offen sc1
            s_mov_b64 exec, -1
            {lab}:
            """)
    def tag_load():
        A("buffer_load_dwordx2 v[24:25], v18, s[56:59], 0 offen sc1")
    def tag_check(lab):
        A(f"""
        s_mov_b32 s11, 0x40000
        {lab}:
        v_cmp_gt_i32 vcc, 0, v25
        s_cbranch_vccnz {lab}_ok
        buffer_load_dwordx2 v[24:25], v18, s[56:59], 0 offen sc1
        s_sub_u32 s11, s11, 1
        s_waitcnt vmcnt(0)
        s_cmp_lg_u32 s11, 0
        s_cbranch_scc1 {lab}
        {lab}_ok:
        v_readfirstlane_b32 s{S_TAG}, v24
        v_readfirstlane_b32 s{S_TAG+1}, v25
        """)
    stamp(A,1)
    dbg_srd("A_z1")
    dma(0); dma(1)
    stats_load(); vm.op("st"); vm.op("st"); vm.op("st")
    tag_load(); vm.op("st")
    stamp(A,2)
    for c in range(8):
        A(f"s_waitcnt vmcnt({vm.need(f'c{c}')})")
        A("s_barrier")
        dma(c+2)
        if c == 1:
            A(f"s_waitcnt vmcnt({vm.need('st')})")
            tag_check("A_tk")
            stats_calc(); vm.op("rs")
    A(f"""
    s_lshl_b32 s37, s27, 2
    s_add_u32 s37, s37, s25
    s_lshl_b32 s37, s37, 9
    s_add_u32 s37, s37, {RS}
    v_lshlrev_b32 v19, 4, v3
    s_lshl_b32 s39, s28, 2
    s_add_u32 s39, s39, s25
    s_mul_i32 s39, s39, 320
    s_add_u32 s39, s39, {CSQ}
    v_min_u32 v5, 19, v3
    v_lshlrev_b32 v5, 4, v5
    v_mul_u32_u24 v6, {960*16}, v4
    v_add_u32 v17, v5, v6
    buffer_load_dwordx4 v[28:31], v19, s[20:23], s37 offen sc1
    buffer_load_dwordx4 v[32:35], v17, s[20:23], s39 offen sc1
    """)
    vm.op("fl"); vm.op("fl")
    A(f"s_waitcnt vmcnt({vm.need('c8')})")
    A("s_barrier")
    A(f"""
    s_cmp_lt_u32 s28, 4
    s_cselect_b32 s10, {f32(QSCALE)}, 1.0
    s_lshl_b32 s11, s25, 7
    s_add_u32 s11, s11, {TAB}
    v_lshl_add_u32 v6, v3, 2, s11
    s_lshl_b32 s11, s25, 8
    s_add_u32 s11, s11, {TAB+1024}
    v_lshl_add_u32 v7, v3, 3, s11
    s_mul_i32 s11, s25, 160
    s_add_u32 s11, s11, {TAB+2048}
    v_lshrrev_b32 v5, 1, v5
    v_add_u32 v5, s11, v5
    v_mov_b32 v26, {TAB+3072}
    s_waitcnt vmcnt(2)
    s_barrier
    s_mov_b32 s11, 0x40000
    s_waitcnt vmcnt(0)
    A_rk:
    v_cmp_ne_u64 vcc, s[{S_TAG}:{S_TAG+1}], v[30:31]
    s_mov_b64 s[52:53], vcc
    v_cmp_ne_u64 vcc, s[{S_TAG}:{S_TAG+1}], v[34:35]
    s_or_b64 s[52:53], s[52:53], vcc
    s_cbranch_scc0 A_rk_ok
    buffer_load_dwordx4 v[28:31], v19, s[20:23], s37 offen sc1
    buffer_load_dwordx4 v[32:35], v17, s[20:23], s39 offen sc1
    s_sub_u32 s11, s11, 1
    s_waitcnt vmcnt(0)
    s_cmp_lg_u32 s11, 0
    s_cbranch_scc1 A_rk
    A_rk_ok:
    v_mov_b32 v36, v32
    v_mov_b32 v37, v33
    v_mul_f32 v28, s10, v28
    v_mul_f32 v29, s10, v29
    v_permlane32_swap_b32 v32, v36
    v_permlane32_swap_b32 v33, v37
    ds_write_b32 v6, v28
    ds_write_b32 v6, v29 offset:512
    v_add_f32 v32, v32, v36
    v_add_f32 v33, v33, v37
    ds_write_b64 v7, v[28:29]
    ds_write_b64 v26, v[30:31]
    ds_write_b64 v5, v[32:33]
    s_waitcnt lgkmcnt(0)
    s_barrier
    """)
    stamp(A,3)
    stamp(A,4)
    A("s_branch F_main")
    A("A_comp:")
    RA0, RB = 8, 12
    XF, WF, ACC, SAD = 16, 24, 64, 144
    A(f"""
    s_mov_b32 s36, {STG}
    s_mov_b32 s34, 0
    v_bfe_u32 v5, v2, 1, 3
    v_xor_b32 v5, v5, v4
    v_lshlrev_b32 v5, 4, v5
    v_lshl_add_u32 v5, v3, 7, v5
    s_lshl_b32 s10, s24, 12
    v_add_u32 v{RA0}, s10, v5
    v_xor_b32 v{RA0+1}, 32, v{RA0}
    v_xor_b32 v{RA0+2}, 64, v{RA0}
    v_xor_b32 v{RA0+3}, 96, v{RA0}
    v_bfe_u32 v5, v2, 2, 2
    v_lshl_add_u32 v6, v4, 3, v5
    v_mul_u32_u24 v6, 320, v6
    v_bfe_u32 v7, v2, 4, 1
    v_lshl_add_u32 v6, v7, 5, v6
    v_add_u32 v{RB}, 16384, v6
    s_and_b32 s42, s28, 3
    s_lshl_b32 s43, s27, 2
    s_add_u32 s43, s43, s24
    s_waitcnt lgkmcnt(0)
    s_mov_b32 s20, s62
    s_mov_b32 s21, s63
    """)
    for r in list(range(XF+4, XF+8)) + list(range(WF+20, ACC + 80)):
        A(f"v_mov_b32 v{r}, 0")
    A("s_cmp_ge_u32 s28, 8")
    A("s_cbranch_scc1 A_preV")
    A(f"""
    v_and_b32 v7, 1, v2
    v_lshl_add_u32 v{RB}, v7, 4, v{RB}
    v_bfe_u32 v7, v2, 1, 1
    v_lshl_add_u32 v{RB}, v7, 3, v{RB}
    s_cmp_lt_u32 s28, 4
    s_cselect_b32 s46, 1, 2
    s_mul_i32 s45, s46, 81920
    s_mul_i32 s46, s46, 1280
    s_cselect_b32 s47, {QF}, {KV}
    s_mul_i32 s43, s43, s46
    s_add_u32 s43, s43, s47
    s_lshl_b32 s10, s42, 3
    s_mul_i32 s10, s10, s45
    s_add_u32 s43, s43, s10
    v_lshlrev_b32 v{SAD}, 4, v3               ; t*16
    v_lshlrev_b32 v{SAD+1}, 3, v3             ; t*8
    v_lshl_add_u32 v{SAD+2}, v4, 9, v{SAD}
    s_sub_u32 s10, s45, 512
    v_mul_lo_u32 v5, v4, s10
    v_add_u32 v{SAD+3}, v5, v{SAD}
    """)
    stamp(A,1); stamp(A,2)
    def loop(vmode, lab):
        def body(emit, q, last=False):
            steps = [(0,0,1),(1,1,0),(2,0,1),(3,1,0)] if not last else [(None,None,1)]
            for ks, bn, bc in steps:
                rds = []
                if ks is not None:
                    rds.append((f"x{bn}", f"ds_read_b128 {vr(XF+4*bn,4)}, v{RA0+ks}"))
                    for j in range(5):
                        rds.append((f"w{bn}{j}", f"ds_read_b64_tr_b16 {vr(WF+20*bn+4*j,2)}, v{RB} offset:{ks*5120+64*j}"))
                        rds.append((f"w{bn}{j}", f"ds_read_b64_tr_b16 {vr(WF+20*bn+4*j+2,2)}, v{RB} offset:{ks*5120+64*j+1280}"))
                for j in range(5):
                    tag = f"w{bc}{j}"
                    idx = [i for i, t in enumerate(q) if t == tag]
                    if idx:
                        n = len(q) - 1 - max(idx)
                        assert n <= 15
                        emit(f"s_waitcnt lgkmcnt({n})")
                        del q[:max(idx)+1]
                    acc = vr(ACC + 16*j, 16)
                    x = vr(XF+4*bc, 4); w = vr(WF+20*bc+4*j, 4)
                    emit(f"v_mfma_f32_32x32x16_bf16 {acc}, {x}, {w}, {acc}" if vmode else f"v_mfma_f32_32x32x16_bf16 {acc}, {w}, {x}, {acc}")
                    for _ in range(3 if j == 0 else 2):
                        if rds:
                            t, ins = rds.pop(0); emit(ins); q.append(t)
                    if ks == 2 and j == 4:
                        emit(f"s_add_u32 s34, s34, 1\ns_and_b32 s10, s34, {NST-1}\ns_cmp_eq_u32 s10, 0\ns_cselect_b32 s35, {(-(NST-1)*STG) & 0xffffffff:#x}, s36")
                    if ks == 3 and j >= 1: emit(f"v_add_u32 v{RA0+j-1}, s35, v{RA0+j-1}")
                if ks == 3:
                    emit(f"v_add_u32 v{RB}, s35, v{RB}\ns_cmp_lt_u32 s34, 10")
        q = []
        body(lambda s: None, q)
        A(f"{lab}:")
        A("s_barrier")
        q2 = list(q)
        body(A, q2)
        assert q2 == q
        A(f"s_cbranch_scc1 {lab}")
        body(A, q2, last=True)
        stamp(A,3)
    loop(0, "A_loopQ")
    CSR, AB = 152, 14
    A(f"""
    s_lshl_b32 s10, s24, 8
    s_add_u32 s10, s10, {TAB+1024}
    v_lshl_add_u32 v5, v3, 3, s10
    v_lshlrev_b32 v6, 5, v4
    v_add_u32 v6, {TAB+2048}, v6
    s_barrier
    ds_read_b64 v[{AB}:{AB+1}], v5
    """)
    def csrd(g):
        A(f"ds_read_b128 {vr(CSR+8*g,4)}, v6 offset:{64*g}")
        A(f"ds_read_b128 {vr(CSR+8*g+4,4)}, v6 offset:{64*g+16}")
    for g in range(6): csrd(g)
    ab = vr(AB, 2)
    def off(G):
        p, m = divmod(G, 5)
        return (2*p, 512*m) if m < 2 else (2*p+1, 512*(m-3))
    for g in range(10):
        A(f"s_waitcnt lgkmcnt({min(10, 2*(9-g))})")
        if g + 6 < 10: csrd(g+6)
        base = ACC + 8*g
        cs = CSR + 8*g
        for e in range(0, 8, 2): A(f"v_pk_mul_f32 {vr(cs+e,2)}, {ab}, {vr(cs+e,2)} op_sel:[1,0] op_sel_hi:[1,1]")
        for e in range(0, 8, 2): A(f"v_pk_fma_f32 {vr(base+e,2)}, {vr(base+e,2)}, {ab}, {vr(cs+e,2)} op_sel_hi:[1,0,1]")
        G0 = 2*g; m0 = G0 % 5
        def so(a): A(f"s_mul_i32 s10, s45, {a}\ns_add_u32 s10, s10, s43")
        if m0 in (0, 3, 4): so(off(G0)[0])
        else: so(off(G0 + (1 if m0 == 2 else 0))[0])
        for e in range(4): A(f"v_cvt_pk_bf16_f32 v{base+e}, v{base+2*e}, v{base+2*e+1}")
        if m0 in (0, 3):
            A(f"buffer_store_dwordx4 {vr(base,4)}, v{SAD+2}, s[20:23], s10 offen sc1")
        elif m0 == 4:
            A(f"buffer_store_dwordx4 {vr(base,4)}, v{SAD+3}, s[20:23], s10 offen offset:512 sc1")
        else:
            Gn = G0 + (1 if m0 == 2 else 0); Gm = G0 + (0 if m0 == 2 else 1)
            A("s_mov_b32 exec_lo, 0" if m0 == 2 else "s_mov_b32 exec_hi, 0")
            A(f"buffer_store_dwordx4 {vr(base,4)}, v{SAD}, s[20:23], s10 offen offset:{off(Gn)[1]} sc1")
            A("s_not_b64 exec, exec")
            so(2*(Gm//5))
            A(f"buffer_store_dwordx2 {vr(base,2)}, v{SAD+1}, s[20:23], s10 offen offset:1024 sc1")
            A("s_add_u32 s10, s10, s45")
            A(f"buffer_store_dwordx2 {vr(base+2,2)}, v{SAD+1}, s[20:23], s10 offen offset:1024 sc1")
            A("s_mov_b64 exec, -1")
    A("s_branch A_cdone")
    A("A_preV:")
    A(f"""
    v_and_b32 v7, 3, v2
    v_lshl_add_u32 v{RB}, v7, 3, v{RB}
    s_mul_i32 s43, s43, 2560
    s_add_u32 s43, s43, {KV}
    s_mul_i32 s10, s42, {8*163840}
    s_add_u32 s43, s43, s10
    s_mov_b32 s45, 163840
    v_mul_u32_u24 v13, 320, v4
    v_add_u32 v13, 1280, v13
    """)
    for j in range(5):
        A(f"""
        v_add_u32 v5, {32*j}, v3
        v_mul_u32_u24 v6, 205, v5
        v_lshrrev_b32 v6, 12, v6
        v_mul_u32_u24 v7, 20, v6
        v_sub_u32 v5, v5, v7
        v_mul_lo_u32 v6, v6, s45
        v_lshl_add_u32 v5, v5, 4, v13
        v_add_u32 v{SAD+j}, v5, v6
        """)
    stamp(A,1); stamp(A,2)
    loop(1, "A_loopV")
    AT, BT, CV = 152, 168, 184
    A(f"""
    v_lshlrev_b32 v5, 2, v3
    v_add_u32 v5, {TAB+2048}, v5
    s_lshl_b32 s10, s24, 7
    s_add_u32 s10, s10, {TAB}
    v_lshl_add_u32 v6, v4, 4, s10
    s_barrier
    """)
    for j in range(5): A(f"ds_read_b32 v{CV+2*j}, v5 offset:{128*j}")
    for g in range(4):
        A(f"ds_read_b128 {vr(AT+4*g,4)}, v6 offset:{32*g}")
        A(f"ds_read_b128 {vr(BT+4*g,4)}, v6 offset:{512+32*g}")
    for m in range(2):
        A(f"s_waitcnt lgkmcnt({4-4*m})")
        for j in range(5):
            base = ACC + 16*j + 8*m
            tmp = 16 + 8*(j & 1)
            for e in range(4): A(f"v_pk_mul_f32 {vr(tmp+2*e,2)}, {vr(BT+8*m+2*e,2)}, {vr(CV+2*j,2)} op_sel_hi:[1,0]")
            for e in range(4): A(f"v_pk_fma_f32 {vr(base+2*e,2)}, {vr(base+2*e,2)}, {vr(AT+8*m+2*e,2)}, {vr(tmp+2*e,2)}")
            for e in range(4): A(f"v_cvt_pk_bf16_f32 v{base+e}, v{base+2*e}, v{base+2*e+1}")
            A(f"buffer_store_dwordx4 {vr(base,4)}, v{SAD+j}, s[20:23], s43 offen offset:{640*m} sc1")
    A("A_cdone:")
    stamp(A,4)
    A(f"""
    v_mov_b32 v7, {TAB+3072}
    ds_read_b64 v[8:9], v7
    s_lshl_b32 s10, s28, 4
    s_add_u32 s10, s10, s27
    s_lshl_b32 s10, s10, 4
    s_add_u32 s10, s10, s24
    s_lshl_b32 s10, s10, 3
    s_add_u32 s10, s10, {FA}
    v_mov_b32 v6, 0
    s_waitcnt lgkmcnt(0)
    v_readfirstlane_b32 s{S_TAG}, v8
    v_readfirstlane_b32 s{S_TAG+1}, v9
    s_waitcnt vmcnt(0)
    s_mov_b64 exec, 1
    buffer_store_dwordx2 v[8:9], v6, s[20:23], s10 offen sc1
    s_mov_b64 exec, -1
    s_branch F_main
    """)
    RL = 131072
    A(f"""
    A_pack:
    s_load_dwordx4 s[44:47], s[0:1], 32
    s_load_dwordx2 s[48:49], s[0:1], 48       ; down
    s_load_dwordx2 s[50:51], s[0:1], 16       ; wo
    s_sub_u32 s26, s2, 192
    v_lshrrev_b32 v8, 3, v2
    v_and_b32 v9, 7, v2
    v_lshlrev_b32 v9, 4, v9
    v_mul_u32_u24 v10, 3840, v8
    v_add_u32 v10, v10, v9
    s_lshr_b32 s10, s26, 1
    s_lshl_b32 s29, s10, 7
    s_and_b32 s11, s26, 1
    s_mul_i32 s11, s11, 320
    s_mul_i32 s30, s24, 40
    s_add_u32 s11, s11, s30
    s_mul_i32 s11, s11, 3840
    s_add_u32 s29, s29, s11
    s_cmp_ge_u32 s26, 60
    s_cselect_b32 s29, 0x40000000, s29
    s_waitcnt lgkmcnt(0)
    s_mov_b32 s12, s4
    s_mov_b32 s13, s5
    s_mov_b32 s16, s6
    s_mov_b32 s17, s7
    s_mov_b32 s20, s62
    s_mov_b32 s21, s63
    """)
    for i in range(5):
        A(f"buffer_load_dwordx4 {vr(44+4*i,4)}, v10, s[16:19], s29 offen")
        A(f"s_add_u32 s29, s29, {8*3840}")
    dbg_srd(None)
    A("s_cmp_lt_u32 s24, 4")
    A("s_cbranch_scc1 A_p0")
    stats_load()
    A("A_p0:")
    tag_load()
    A(f"""
    v_mul_u32_u24 v11, 3072, v8
    v_add_u32 v11, v11, v9
    v_mul_u32_u24 v12, 1280, v8
    v_add_u32 v12, v12, v9
    v_lshrrev_b32 v13, 2, v8
    v_mul_u32_u24 v13, 40, v13
    v_and_b32 v14, 3, v8
    v_add_u32 v13, v13, v14
    v_add_u32 v13, 16, v13
    v_mul_u32_u24 v13, 1280, v13
    v_add_u32 v13, v13, v9
    s_lshl_b32 s40, s24, 6
    s_add_u32 s40, s40, s26
    s_lshl_b32 s41, s24, 14
    s_mov_b32 s64, s40
    s_mov_b32 s65, s41
    s_mov_b32 s55, 0x20000
    v_bfe_u32 v5, v2, 2, 2
    v_bfe_u32 v7, v2, 4, 1
    v_and_b32 v8, 3, v2
    v_lshl_add_u32 v14, v4, 3, v5
    v_lshlrev_b32 v14, 7, v14
    v_lshl_add_u32 v14, v7, 11, v14
    v_lshl_add_u32 v14, v8, 3, v14
    v_lshl_add_u32 v15, v7, 2, v5
    v_lshl_add_u32 v15, v4, 4, v15
    v_lshlrev_b32 v15, 7, v15
    v_lshl_add_u32 v15, v8, 3, v15
    v_lshlrev_b32 v1, 4, v2
    s_branch A_pm
    A_p1:
    s_mov_b32 m0, s41
    s_cmp_lt_u32 s40, 960
    s_cbranch_scc0 A_p2
    s_mul_i32 s10, s40, 2731
    s_lshr_b32 s10, s10, 16                   ; ks16 = T/24
    s_mul_i32 s11, s10, 24
    s_sub_u32 s11, s40, s11
    s_mul_i32 s10, s10, {16*3072}
    s_lshl_b32 s11, s11, 7
    s_add_u32 s10, s10, s11
    s_add_u32 s11, s10, {8*3072-1024}
    s_mov_b32 s52, s44
    s_mov_b32 s53, s45
    s_mov_b32 s54, {640*1536*2}
    buffer_load_dwordx4 v11, s[52:55], s10 offen lds
    buffer_load_dwordx4 v11, s[52:55], s11 offen offset:1024 lds
    s_add_u32 m0, s41, 2048
    s_mov_b32 s52, s46
    s_mov_b32 s53, s47
    buffer_load_dwordx4 v11, s[52:55], s10 offen lds
    buffer_load_dwordx4 v11, s[52:55], s11 offen offset:1024 lds
    s_branch A_p5
    A_p2:
    s_sub_u32 s42, s40, 960
    s_mul_i32 s10, s42, 6554
    s_lshr_b32 s10, s10, 16                   ; ks32 (0..67)
    s_mul_i32 s11, s10, 10
    s_sub_u32 s11, s42, s11
    s_lshl_b32 s11, s11, 7
    s_cmp_lt_u32 s10, 48
    s_cbranch_scc0 A_p3
    s_mul_i32 s10, s10, {32*1280}
    s_add_u32 s10, s10, s11
    s_mov_b32 s52, s48
    s_mov_b32 s53, s49
    s_mov_b32 s54, {1536*640*2}
    s_mov_b32 s42, {16*1280-2048}
    s_branch A_p4
    A_p3:
    s_mov_b32 s52, s50
    s_mov_b32 s53, s51
    s_mov_b32 s54, {640*640*2}
    s_cmp_lt_u32 s10, 64
    s_cbranch_scc0 A_p6
    s_sub_u32 s10, s10, 48
    s_mul_i32 s10, s10, {40*1280}
    s_add_u32 s10, s10, s11
    s_mov_b32 s42, {20*1280-2048}
    A_p4:
    s_add_u32 s11, s10, {8*1280-1024}
    buffer_load_dwordx4 v12, s[52:55], s10 offen lds
    buffer_load_dwordx4 v12, s[52:55], s11 offen offset:1024 lds
    s_add_u32 s10, s10, s42
    s_add_u32 s11, s11, s42
    buffer_load_dwordx4 v12, s[52:55], s10 offen offset:2048 lds
    buffer_load_dwordx4 v12, s[52:55], s11 offen offset:3072 lds
    s_branch A_p5
    A_p6:
    s_sub_u32 s10, s10, 64
    s_mul_i32 s10, s10, {160*1280}
    s_add_u32 s10, s10, s11
    s_add_u32 s11, s10, {20*1280-1024}
    buffer_load_dwordx4 v13, s[52:55], s10 offen lds
    buffer_load_dwordx4 v13, s[52:55], s11 offen offset:1024 lds
    s_add_u32 s10, s10, {80*1280-2048}
    s_add_u32 s11, s11, {80*1280-2048}
    buffer_load_dwordx4 v13, s[52:55], s10 offen offset:2048 lds
    buffer_load_dwordx4 v13, s[52:55], s11 offen offset:3072 lds
    A_p5:
    s_add_u32 s40, s40, 512
    s_add_u32 s41, s41, 4096
    s_setpc_b64 s[34:35]
    A_q1:
    s_cmp_lt_u32 s64, 960
    s_cbranch_scc0 A_q2
    s_mul_i32 s10, s64, 2731
    s_lshr_b32 s10, s10, 16
    s_mul_i32 s11, s10, 24
    s_sub_u32 s42, s64, s11
    s_mul_i32 s43, s10, 3072
    s_add_u32 s43, s43, {WGP}
    s_mov_b32 s66, 3
    s_mov_b32 s67, 342
    s_mov_b32 s68, 122880
    v_add_u32 v5, s65, v14
    v_add_u32 v6, 512, v5
    s_branch A_q4
    A_q2:
    s_sub_u32 s42, s64, 960
    s_mul_i32 s10, s42, 6554
    s_lshr_b32 s10, s10, 16
    s_mul_i32 s11, s10, 10
    s_sub_u32 s42, s42, s11
    s_mul_i32 s43, s10, 5120
    s_mov_b32 s66, 5
    s_mov_b32 s67, 205
    s_mov_b32 s68, 245760
    s_add_u32 s43, s43, {WDP}
    s_cmp_lt_u32 s10, 48
    s_cbranch_scc1 A_q3
    s_mov_b32 s68, 102400
    s_add_u32 s43, s43, {WOP-WDP-48*5120}
    A_q3:
    v_add_u32 v5, s65, v15
    v_add_u32 v6, 1024, v5
    A_q4:
    s_lshl_b32 s42, s42, 2
    """)
    PR = 128
    for t in range(4):
        A(f"ds_read_b64_tr_b16 {vr(PR+4*t,2)}, v5 offset:{32*t}")
        A(f"ds_read_b64_tr_b16 {vr(PR+2+4*t,2)}, v6 offset:{32*t}")
    for t in range(4):
        A(f"""
        s_add_u32 s10, s42, {t}
        s_mul_i32 s11, s10, s67
        s_lshr_b32 s11, s11, 10
        s_mul_i32 s29, s11, s66
        s_sub_u32 s10, s10, s29
        s_lshl_b32 s10, s10, 10
        s_mul_i32 s11, s11, s68
        s_add_u32 s10, s10, s11
        s_add_u32 s10, s10, s43
        s_waitcnt lgkmcnt({6-2*t})
        buffer_store_dwordx4 {vr(PR+4*t,4)}, v1, s[20:23], s10 offen {'' if 'pwb' in OPT else 'sc1'}
        """)
    A(f"""
    s_add_u32 s64, s64, 512
    s_add_u32 s65, s65, 4096
    s_setpc_b64 s[34:35]
    A_pm:
    s_waitcnt vmcnt(0)
    s_call_b64 s[34:35], A_p1
    s_waitcnt vmcnt(4)
    """)
    tag_check("A_tk2")
    for e in range(8): A(f"v_mov_b32 v{64+e}, 0")
    for d in range(20):
        e = 2*(d % 4)
        A(f"v_lshlrev_b32 v5, 16, v{44+d}")
        A(f"v_and_b32 v6, 0xffff0000, v{44+d}")
        A(f"v_add_f32 v{64+e}, v{64+e}, v5")
        A(f"v_add_f32 v{65+e}, v{65+e}, v6")
    A("s_nop 1")
    for e in range(8): A(f"v_add_f32_dpp v{64+e}, v{64+e}, v{64+e} row_ror:8 row_mask:0xf bank_mask:0xf")
    for e in range(8): A(f"v_mov_b32 v{72+e}, v{64+e}")
    A("s_nop 1")
    for e in range(8): A(f"v_permlane16_swap_b32 v{64+e}, v{72+e}")
    A("s_nop 1")
    for e in range(8): A(f"v_add_f32 v{64+e}, v{64+e}, v{72+e}")
    for e in range(8): A(f"v_mov_b32 v{72+e}, v{64+e}")
    A("s_nop 1")
    for e in range(8): A(f"v_permlane32_swap_b32 v{64+e}, v{72+e}")
    A("s_nop 1")
    for e in range(8): A(f"v_add_f32 v{64+e}, v{64+e}, v{72+e}")
    A(f"""
    s_lshl_b32 s10, s24, 8
    s_add_u32 s10, s10, {RL}
    v_lshl_add_u32 v5, v9, 1, s10
    ds_write_b128 v5, v[64:67]
    ds_write_b128 v5, v[68:71] offset:16
    s_cmp_lt_u32 s24, 4
    s_cbranch_scc1 A_p8
    """)
    stats_calc()
    A(f"""
    A_p8:
    s_waitcnt lgkmcnt(0)
    s_barrier
    s_cmp_lg_u32 s24, 0
    s_cbranch_scc1 A_p7
    s_cmp_ge_u32 s26, 60
    s_cbranch_scc1 A_p7
    v_lshlrev_b32 v5, 3, v3
    v_add_u32 v5, {RL}, v5
    """)
    for w in range(8): A(f"ds_read_b64 {vr(64+2*w,2)}, v5 offset:{256*w}")
    A(f"""
    s_lshr_b32 s10, s26, 1
    s_lshl_b32 s10, s10, 9
    s_and_b32 s11, s26, 1
    s_mul_i32 s11, s11, {960*16}
    s_add_u32 s10, s10, s11
    s_add_u32 s10, s10, {CSQ}
    v_lshlrev_b32 v5, 4, v3
    s_waitcnt lgkmcnt(0)
    v_pk_add_f32 v[64:65], v[64:65], v[72:73]
    v_pk_add_f32 v[66:67], v[66:67], v[74:75]
    v_pk_add_f32 v[68:69], v[68:69], v[76:77]
    v_pk_add_f32 v[70:71], v[70:71], v[78:79]
    v_pk_add_f32 v[64:65], v[64:65], v[68:69]
    v_pk_add_f32 v[66:67], v[66:67], v[70:71]
    v_pk_add_f32 v[22:23], v[64:65], v[66:67]
    s_mov_b32 exec_hi, 0
    buffer_store_dwordx4 v[22:25], v5, s[20:23], s10 offen sc1
    s_mov_b32 exec_hi, -1
    A_p7:
    s_call_b64 s[34:35], A_p1
    s_call_b64 s[34:35], A_p1
    s_cmp_ge_u32 s40, 1640
    s_cbranch_scc1 A_p9
    s_call_b64 s[34:35], A_p1
    s_waitcnt vmcnt(12)
    s_call_b64 s[34:35], A_q1
    A_p9:
    s_waitcnt vmcnt(8)
    s_call_b64 s[34:35], A_q1
    s_waitcnt vmcnt(8)
    s_call_b64 s[34:35], A_q1
    s_waitcnt vmcnt(8)
    s_call_b64 s[34:35], A_q1
    """)
    if 'pwb' in OPT:
        A("""
        s_waitcnt vmcnt(0)
        s_barrier
        s_cmp_lg_u32 s24, 0
        s_cbranch_scc1 A_pz
        buffer_wbl2 sc1
        s_waitcnt vmcnt(0)
        A_pz:
        """)
    A(f"""
    s_getreg_b32 s10, hwreg(HW_REG_XCC_ID)
    s_and_b32 s10, s10, 15
    s_add_u32 s10, s10, 1
    v_mov_b32 v26, s10
    s_lshl_b32 s10, s2, 7
    s_add_u32 s10, s10, {FP}
    s_waitcnt vmcnt(0)
    s_barrier
    s_cmp_lg_u32 s24, 0
    s_cbranch_scc1 A_pe
    s_mov_b64 exec, 1
    buffer_store_dwordx4 v[24:27], v18, s[20:23], s10 offen sc1
    s_mov_b64 exec, -1
    A_pe:
    """)
    stamp(A,1); stamp(A,2); stamp(A,3); stamp(A,4)
    assert all((T*2731)>>16 == T//24 for T in range(960))
    assert all((T*6554)>>16 == T//10 for T in range(680))
    assert all((e*205)>>12 == e//20 for e in range(320))
    assert all(((15*r+10*c)*43)>>8 == (15*r+10*c)//6 for r in range(4) for c in range(6))
```

```python
from asmlib import *
import asmlib
from layout import *
import math, os
OPT = set(os.environ.get('OPT','').split(','))

class VM:
    def __init__(self): self.q = []
    def op(self, tag): self.q.append(tag)
    def need(self, tag):
        idx = max(i for i, t in enumerate(self.q) if t == tag)
        n = len(self.q) - 1 - idx
        assert n <= 63
        return n
    def clear(self): self.q = []
    def mark(self, tag): self.m = getattr(self, 'm', {}); self.m[tag] = len(self.q)
    def since(self, tag): return len(self.q) - self.m[tag]

VO80, TCH, XT, JUNK, L4, L16 = 112, 121, 122, 123, 124, 125
PK = 128
XL = 102400
RED = 122880
CSP = 143360
S_W, S_G, S_IDX = 24, 25, 26
S_HD, S_QB = 38, 39
S_TAG = 98
S_GB, S_FL, S_MODE, S_XCC = 52, 53, 54, 55
S_RT4, S_CBK, S_RT, S_KH, S_RT16 = 56, 57, 58, 59, 66

def poll(A, name, voff, soff, off=0, acquire=True, sleep=0):
    A(f"""
    s_mov_b32 s11, 0x40000
    {name}_poll:
    {f's_sleep {sleep}' if sleep else ''}
    buffer_load_dwordx2 v[6:7], v{voff}, s[20:23], {soff} offen offset:{off} sc1
    s_sub_u32 s11, s11, 1
    s_cmp_eq_u32 s11, 0
    s_cbranch_scc1 {name}_got
    s_waitcnt vmcnt(0)
    v_cmp_ne_u64 vcc, s[{S_TAG}:{S_TAG+1}], v[6:7]
    s_cbranch_vccnz {name}_poll
    {name}_got:
    """)
    if acquire:
        A(f"""
        s_cmp_eq_u32 s{S_MODE}, 0
        s_cbranch_scc1 {name}_p1
        buffer_inv sc1
        s_waitcnt vmcnt(0)
        {name}_p1:
        """)

def signal(A, name, soff):
    A(f"""
    v_mov_b32 v6, s{S_TAG}
    v_mov_b32 v7, s{S_TAG+1}
    v_mov_b32 v5, 0
    s_waitcnt vmcnt(0)
    s_mov_b64 exec, 1
    s_cmp_lg_u32 s{S_MODE}, 0
    s_cbranch_scc1 {name}_slow
    buffer_store_dwordx2 v[6:7], v5, s[20:23], {soff} offen
    s_branch {name}_p0
    {name}_slow:
    buffer_wbl2 sc1
    s_waitcnt vmcnt(0)
    buffer_store_dwordx2 v[6:7], v5, s[20:23], {soff} offen sc0 sc1
    {name}_p0:
    s_mov_b64 exec, -1
    """)

NBR = int(os.environ.get('NBR', 10))
BIF = int(os.environ.get('BIF', 2))
def gen_main(A, name):
    import phasea
    kernel_begin(A, name)
    if 'sta' in OPT:
        phasea.stamp = lambda A, i: asmlib.stamp(A, i+1 if i else 0)
        stamp = lambda A, i: asmlib.stamp(A, {2: 8, 3: 9, 5: 10, 11: 11}[i]) if i in (2, 3, 5, 11) else None
        sta = lambda i: asmlib.stamp(A, i)
    else:
        phasea.stamp = lambda A, i: asmlib.stamp(A, 0) if i == 0 else None
        stamp = asmlib.stamp
        sta = lambda i: None
    phasea.gen_phase_a(A)
    vm = VM()
    Q0, Q1, K0, K1, V0, V1, P0, P1 = 8, 12, 16, 20, 24, 28, 32, 36
    AK0, AK1, AV = 40, 41, 42
    NEGM, SA, SB, O = 48, 64, 80, 96
    A("F_main:")
    sta(6)
    QL = 151552
    A(f"""
    s_load_dwordx2 s[6:7], s[0:1], 56
    s_mov_b32 s8, s62
    s_mov_b32 s9, s63
    s_and_b32 s{S_G}, s2, 7
    s_lshr_b32 s{S_IDX}, s2, 3
    s_and_b32 s10, s{S_IDX}, 3
    s_lshl_b32 s{S_HD}, s{S_G}, 2
    s_add_u32 s{S_HD}, s{S_HD}, s10
    s_lshr_b32 s{S_QB}, s{S_IDX}, 2
    v_lshlrev_b32 v14, 3, v2
    v_lshlrev_b32 v{L16}, 4, v2
    s_mul_i32 s29, s{S_HD}, 163840
    s_add_u32 s37, s29, 163840
    s_mul_i32 s34, s{S_QB}, 20480
    s_add_u32 s34, s34, s29
    s_cmp_lt_u32 s{S_W}, 4
    s_cbranch_scc1 F_m1
    v_min_u32 v15, 2, v2
    v_lshlrev_b32 v15, 8, v15
    s_sub_u32 s10, s{S_W}, 4
    s_lshl_b32 s31, s{S_QB}, 2
    s_add_u32 s31, s31, s10
    s_lshl_b32 s31, s31, 3
    s_add_u32 s31, s31, s{S_FL}
    s_lshl_b32 s28, s{S_HD}, 3
    s_add_u32 s28, s28, s{S_QB}
    s_lshl_b32 s28, s28, 2
    s_add_u32 s28, s28, s10
    s_mul_i32 s28, s28, 2560
    s_add_u32 s28, s28, {QF}
    """)
    poll(A, "F_s0", 15, "s31", 2048, sleep=int(os.environ.get('SL', 2)))
    A(f"""
    s_mul_i32 s11, s10, 2560
    s_add_u32 m0, s11, {QL}
    s_mul_i32 s11, s10, 5120
    buffer_load_dwordx4 v{L16}, s[20:23], s28 offen sc1 lds
    buffer_load_dwordx4 v{L16}, s[20:23], s28 offen offset:1024 sc1 lds
    s_mov_b32 exec_hi, 0
    buffer_load_dwordx4 v{L16}, s[20:23], s28 offen offset:2048 sc1 lds
    s_mov_b32 exec_hi, -1
    s_mov_b32 m0, s11
    s_add_u32 s11, s11, s34
    buffer_load_dwordx4 v{L16}, s[20:23], s11 offen sc1 lds
    buffer_load_dwordx4 v{L16}, s[20:23], s11 offen offset:1024 sc1 lds
    buffer_load_dwordx4 v{L16}, s[20:23], s11 offen offset:2048 sc1 lds
    buffer_load_dwordx4 v{L16}, s[20:23], s11 offen offset:3072 sc1 lds
    s_add_u32 m0, m0, 4096
    s_add_u32 s11, s11, 4096
    buffer_load_dwordx4 v{L16}, s[20:23], s11 offen sc1 lds
    F_m1:
    v_lshlrev_b32 v{AK1}, 3, v3
    v_add_u32 v{AK1}, 1024, v{AK1}
    s_lshl_b32 s30, s{S_W}, 10
    s_add_u32 s30, s30, 20480
    s_add_u32 s34, s34, s30
    s_sub_u32 s10, s34, 163840
    s_cmp_ge_u32 s34, s37
    s_cselect_b32 s34, s10, s34
    s_waitcnt lgkmcnt(0)
    """)
    sta(7)
    kvr = [0]
    def kv_round():
        last = kvr[0] == 17
        if last:
            A(f"s_cmp_ge_u32 s{S_W}, 4")
            A("s_cbranch_scc1 F_kvl")
        A(f"""
        s_mov_b32 m0, s30
        s_add_u32 s30, s30, 8192
        buffer_load_dwordx4 v{L16}, s[20:23], s34 offen sc1 lds
        s_add_u32 s34, s34, 8192
        s_sub_u32 s10, s34, 163840
        s_cmp_ge_u32 s34, s37
        s_cselect_b32 s34, s10, s34
        """)
        if last:
            A("F_kvl:"); vm.mark("kvl")
        else: vm.op(f"kv{kvr[0]}")
        kvr[0] += 1
    srd(A, 12, 4, 2048*640*2)
    srd(A, 40, 6, 2048*640*2)
    A(f"""
    v_lshlrev_b32 v{AK0}, 4, v2
    s_mul_i32 s{S_GB}, s{S_G}, {GRP_SZ}
    s_add_u32 s{S_GB}, s{S_GB}, {GRP}
    v_mul_u32_u24 v5, 20, v4
    v_add_u32 v5, v5, v3
    v_lshlrev_b32 v5, 4, v5
    v_add_u32 v{AV}, 1280, v5
    s_mov_b32 s32, 0x000fffff
    s_mov_b32 s33, 0x000fffff
    v_lshlrev_b32 v{L4}, 3, v3
    v_lshlrev_b32 v{TCH}, 7, v2
    s_lshr_b32 s{S_RT4}, s{S_IDX}, 3
    s_and_b32 s{S_CBK}, s{S_IDX}, 7
    s_add_u32 s{S_RT}, s{S_W}, s{S_CBK}
    s_and_b32 s{S_RT}, s{S_RT}, 3
    s_lshr_b32 s{S_KH}, s{S_W}, 2
    s_lshl_b32 s10, s{S_RT4}, 2
    s_add_u32 s{S_RT16}, s10, s{S_RT}
    """)
    for i in range(2):
        A(f"""
        v_add_u32 v5, {512*i}, v0
        v_mul_u32_u24 v6, 6554, v5
        v_lshrrev_b32 v6, 16, v6
        v_mul_u32_u24 v7, 10, v6
        v_sub_u32 v5, v5, v7
        v_mul_u32_u24 v6, 1280, v6
        v_lshl_add_u32 v{VO80+i}, v5, 4, v6
        """)
    A(f"""
    s_mul_i32 s65, s{S_CBK}, {48*5120}
    s_add_u32 s65, s65, {WDP}
    s_mul_i32 s35, s{S_IDX}, 122880
    s_add_u32 s35, s35, {WGP}
    s_cmp_eq_u32 s{S_KH}, 0
    s_cselect_b32 s35, s35, s65
    s_mul_i32 s10, s{S_W}, 30720
    s_add_u32 s35, s35, s10
    s_lshl_b32 s67, s{S_W}, 10         ; W_C lds
    s_mul_i32 s68, s{S_CBK}, 102400
    s_add_u32 s68, s68, s67
    s_add_u32 s68, s68, {WOP}
    s_lshl_b32 s11, s{S_G}, 2
    s_add_u32 s11, s11, s{S_RT4}
    s_mul_i32 s69, s11, {64*1280}
    s_mul_i32 s10, s{S_CBK}, 160
    s_add_u32 s69, s69, s10
    s_mul_i32 s36, s{S_IDX}, {(GRP_SZ-G_T)//32}
    s_mul_i32 s10, s{S_W}, {25*128}
    s_add_u32 s36, s36, s10
    s_add_u32 s36, s36, {G_T}
    s_add_u32 s36, s36, s{S_GB}
    s_mov_b32 s51, {FP}
    v_and_b32 v5, 27, v2
    v_cmp_eq_u32 vcc, 24, v5
    v_mov_b32 v6, 0x3f803f80
    s_nop 1
    """)
    for r in range(8): A(f"v_cndmask_b32 v{V0+r}, 0, v6, vcc")
    for r in range(16): A(f"v_mov_b32 v{O+r}, 0")
    for r in range(4): A(f"v_mov_b32 v{P1+r}, 0")
    A(f"""
    s_mul_i32 s10, s{S_W}, 1280
    s_add_u32 s10, s10, {QL}
    v_add_u32 v5, s10, v{AK0}
    v_add_u32 v6, s10, v{AK1}
    v_mov_b32 v{Q1}, 0
    v_mov_b32 v{Q1+1}, 0
    s_cmp_lt_u32 s{S_W}, 4
    s_cbranch_scc1 F_m3
    s_waitcnt vmcnt(0)
    F_m3:
    s_barrier
    ds_read_b128 {vr(Q0,4)}, v5
    s_mov_b32 exec_hi, 0
    ds_read_b64 {vr(Q1,2)}, v6
    s_mov_b32 exec_hi, -1
    ds_read_b128 {vr(K0,4)}, v{AK0}
    ds_read_b64 {vr(K1,2)}, v{AK1}
    buffer_load_dwordx2 v[114:115], v14, s[20:23], s{S_FL} offen offset:2304 sc1
    s_waitcnt lgkmcnt(0)
    v_mfma_f32_32x32x16_bf16 {vr(SA,16)}, {vr(K0,4)}, {vr(Q0,4)}, 0
    v_mfma_f32_32x32x8_bf16 {vr(SA,16)}, {vr(K1,2)}, {vr(Q1,2)}, {vr(SA,16)}
    ds_read_b128 {vr(K0,4)}, v{AK0} offset:2560
    ds_read_b64 {vr(K1,2)}, v{AK1} offset:2560
    s_nop 6
    """)
    A(f"""
    s_nop 2
    v_max3_f32 v5, v{SA}, v{SA+1}, v{SA+2}
    v_max3_f32 v6, v{SA+3}, v{SA+4}, v{SA+5}
    v_max3_f32 v5, v5, v{SA+6}, v{SA+7}
    v_max3_f32 v6, v6, v{SA+8}, v{SA+9}
    v_max3_f32 v5, v5, v{SA+10}, v{SA+11}
    v_max3_f32 v6, v6, v{SA+12}, v{SA+13}
    v_max3_f32 v5, v5, v{SA+14}, v{SA+15}
    v_max_f32 v5, v5, v6
    v_mov_b32 v6, v5
    s_nop 1
    v_permlane32_swap_b32 v5, v6
    s_nop 1
    v_max_f32 v5, v5, v6
    """)
    for r in range(16): A(f"v_sub_f32 v{NEGM+r}, 0, v5")
    for r in range(16): A(f"v_sub_f32 v{SA+r}, v{SA+r}, v5")
    stamp(A, 2)
    def pk_load(j):
        def f():
            A(f"buffer_load_dwordx4 {vr(PK+4*j,4)}, v{L16}, s[20:23], s35 offen offset:{(j%4)*1024} sc1")
            if j % 4 == 3: A("s_add_u32 s35, s35, 4096")
            vm.op("pk")
        return f
    def wc_piece(j):
        def f():
            lab = None
            if j == 12:
                lab = A.label("F_wc")
                A(f"s_cmp_ge_u32 s{S_W}, 4")
                A(f"s_cbranch_scc1 {lab}")
            A(f"""
            s_mov_b32 m0, s67
            s_add_u32 s67, s67, 8192
            buffer_load_dwordx4 v{L16}, s[20:23], s68 offen sc1 lds
            s_add_u32 s68, s68, 8192
            """)
            if lab: A(f"{lab}:")
            else: vm.op("wc")
        return f
    def x_piece(i):
        def f():
            lab = None
            if i == 1:
                lab = A.label("F_xp")
                A(f"s_cmp_ge_u32 s{S_W}, 2")
                A(f"s_cbranch_scc1 {lab}")
            A(f"""
            s_lshl_b32 s10, s{S_W}, 10
            s_add_u32 m0, s10, {XL+8192*i}
            s_nop 0
            buffer_load_dwordx4 v{VO80+i}, s[12:15], s69 offen lds
            """)
            if lab: A(f"{lab}:")
            else: vm.op("x")
        return f
    def touch():
        A(f"""
        s_mov_b64 exec, 0x1ffffff
        buffer_load_dword v{JUNK}, v{TCH}, s[20:23], s36 offen sc1
        s_mov_b64 exec, -1
        """)
        vm.op("x")
    def kv_check():
        A(f"""
        s_mov_b32 s11, 0x40000
        s_waitcnt vmcnt(0)
        F_kc:
        v_cmp_ne_u64 vcc, s[{S_TAG}:{S_TAG+1}], v[114:115]
        s_cbranch_vccz F_ko
        buffer_load_dwordx2 v[114:115], v14, s[20:23], s{S_FL} offen offset:2304 sc1
        s_sub_u32 s11, s11, 1
        s_waitcnt vmcnt(0)
        s_cmp_lg_u32 s11, 0
        s_cbranch_scc1 F_kc
        F_ko:
        s_cmp_eq_u32 s{S_MODE}, 0
        s_cbranch_scc1 F_kp
        buffer_inv sc1
        s_waitcnt vmcnt(0)
        F_kp:
        """)
        kv_round()
    def fp_load():
        A(f"buffer_load_dwordx2 v[114:115], v{TCH}, s[20:23], s51 offen sc1")
        vm.op("fp")
    def fp_check():
        A(f"""
        s_mov_b32 s11, 0x40000
        s_waitcnt vmcnt({vm.need('fp')})
        F_fpc:
        v_cmp_ne_u64 vcc, s[{S_TAG}:{S_TAG+1}], v[114:115]
        s_cbranch_vccz F_fpo
        buffer_load_dwordx2 v[114:115], v{TCH}, s[20:23], s51 offen sc1
        s_sub_u32 s11, s11, 1
        s_waitcnt vmcnt(0)
        s_cmp_lg_u32 s11, 0
        s_cbranch_scc1 F_fpc
        F_fpo:
        """)
    def xcc_load():
        A(f"v_and_b32 v5, 0x780, v{TCH}")
        A(f"buffer_load_dword v{JUNK}, v5, s[20:23], s{S_FL} offen sc1")
        vm.op("x")
    def we_touch():
        A(f"""
        s_lshl_b32 s10, s{S_RT4}, 3
        s_add_u32 s10, s10, s{S_W}
        s_mul_i32 s10, s10, 3840
        s_add_u32 s10, s10, s65
        s_mov_b64 exec, 0x3fffffff
        buffer_load_dword v{JUNK}, v{TCH}, s[20:23], s10 offen sc1
        s_mov_b64 exec, -1
        """)
        vm.op("x")
    def code_touch():
        lab = A.label("F_ct")
        A(f"""
        s_cmp_lg_u32 s{S_W}, 7
        s_cbranch_scc1 {lab}
        s_getpc_b64 s[10:11]
        F_ctpc:
        s_and_b32 s28, s{S_IDX}, 3
        s_lshl_b32 s28, s28, 13
        v_add_u32 v5, s28, v{TCH}
        v_min_u32 v5, F_kend-F_ctpc-4, v5
        global_load_dword v{JUNK}, v5, s[10:11]
        {lab}:
        """)
    jobs, jobs2 = {}, {}
    jobs[1] = kv_check
    jobs2[2] = kv_round
    jobs[3] = kv_round
    for r in range(3, 18): jobs[2*(r-1)] = kv_round
    jobs[5] = fp_load
    jobs[9] = fp_check
    n = 10
    for j in range(30):
        jobs2[n] = pk_load(j); n += 2 if j < 15 else 1
    assert n <= 56, n
    for j in range(13): jobs[44+j] = wc_piece(j)
    jobs[33] = we_touch
    jobs[35] = xcc_load
    if 'jearly' in OPT:
        for j in range(13): del jobs[44+j]
        jobs[44] = x_piece(0)
        jobs[45] = x_piece(1)
        for j in range(13): jobs[46+j] = wc_piece(j)
        jobs[int(os.environ.get('TT', 41))] = touch
    else:
        jobs[57] = x_piece(0)
        jobs[58] = x_piece(1)
        jobs2[56] = touch
    bars = {6: "kv1", 12: "kv5", 24: "kv11", 44: "kvl"}
    baseK = 0; baseV = 0
    for n in range(64):
        S, Sn = (SA, SB) if n % 2 == 0 else (SB, SA)
        def ex(a, b):
            for r in range(a, b): A(f"v_exp_f32 v{S+r}, v{S+r}")
        def cv(P, a):
            for e in range(4): A(f"v_cvt_pk_bf16_f32 v{P+e}, v{S+a+2*e}, v{S+a+2*e+1}")
        if n in bars:
            A(f"s_waitcnt vmcnt({vm.since('kvl') if bars[n] == 'kvl' else vm.need(bars[n])})")
            A("s_barrier")
        A(f"s_setprio {3-(n%4)}")
        if 'attnst' in OPT and n % 8 == 0 and n > 0: asmlib.stamp(A, 3 + n//8)
        if 2560*n + 640 - baseV > 65000:
            A(f"v_add_u32 v{AV}, {2560*n-baseV}, v{AV}"); baseV = 2560*n
        if 2560*(n+2) - baseK > 65000:
            A(f"v_add_u32 v{AK0}, {2560*(n+2)-baseK}, v{AK0}")
            A(f"v_add_u32 v{AK1}, {2560*(n+2)-baseK}, v{AK1}"); baseK = 2560*(n+2)
        ex(0, 2)
        A(f"v_mfma_f32_32x32x16_bf16 {vr(O,16)}, {vr(V1,4)}, {vr(P1,4)}, {vr(O,16)}")
        A("s_mov_b64 exec, s[32:33]")
        A(f"ds_read_b128 {vr(V0,4)}, v{AV} offset:{2560*n-baseV}")
        A(f"ds_read_b128 {vr(V1,4)}, v{AV} offset:{2560*n-baseV+640}")
        A("s_mov_b64 exec, -1")
        if n in jobs2: jobs2[n]()
        ex(2, 7)
        if n < 63:
            A("s_waitcnt lgkmcnt(2)")
            A(f"v_mfma_f32_32x32x16_bf16 {vr(Sn,16)}, {vr(K0,4)}, {vr(Q0,4)}, {vr(NEGM,16)}")
        ex(7, 8)
        cv(P0, 0)
        ex(8, 10)
        if n < 63:
            A(f"v_mfma_f32_32x32x8_bf16 {vr(Sn,16)}, {vr(K1,2)}, {vr(Q1,2)}, {vr(Sn,16)}")
        if n < 62:
            A(f"ds_read_b128 {vr(K0,4)}, v{AK0} offset:{2560*(n+2)-baseK}")
            A(f"ds_read_b64 {vr(K1,2)}, v{AK1} offset:{2560*(n+2)-baseK}")
        if n in jobs: jobs[n]()
        ex(10, 15)
        A(f"s_waitcnt lgkmcnt({2 if n < 62 else 0})")
        A(f"v_mfma_f32_32x32x16_bf16 {vr(O,16)}, {vr(V0,4)}, {vr(P0,4)}, {vr(O,16)}")
        ex(15, 16)
        cv(P1, 8)
    A("s_setprio 0")
    A("s_nop 0")
    A(f"v_mfma_f32_32x32x16_bf16 {vr(O,16)}, {vr(V1,4)}, {vr(P1,4)}, {vr(O,16)}")
    stamp(A, 3)
    if 'attnst' in OPT:
        def stamp(A, i): pass
    est = (lambda i: asmlib.stamp(A, i)) if 'est' in OPT else (lambda i: None)
    if 'est' in OPT:
        def stamp(A, i):
            if i >= 8: asmlib.stamp(A, i)
    A(f"""
    v_lshrrev_b32 v5, 4, v3
    v_mul_u32_u24 v5, {20*1024}, v5
    v_and_b32 v6, 15, v3
    v_lshl_add_u32 v17, v6, 4, v5     ; (t>>4)*20480 + (t&15)*16
    v_lshl_add_u32 v16, v4, 8, v17    ; + h*256
    s_mul_i32 s44, s{S_QB}, {GRP_SZ}
    s_mul_i32 s10, s{S_W}, 40960
    s_add_u32 s44, s44, s10
    s_add_u32 s44, s44, {GRP+G_O}
    s_lshr_b32 s10, s{S_HD}, 1
    s_lshl_b32 s10, s10, 8
    s_and_b32 s11, s{S_HD}, 1
    s_lshl_b32 s11, s11, 3
    s_add_u32 s45, s10, s11
    s_add_u32 s45, s45, s44
    s_add_u32 s45, s45, 16384
    s_lshl_b32 s10, s{S_HD}, 9
    s_add_u32 s44, s44, s10
    ; run-time check of the stand-in max: row sum (>= 1) must stay far below overflow and the outputs finite
    v_add_f32 v6, abs(v{O}), abs(v{O+1})
    v_add_f32 v7, abs(v{O+2}), abs(v{O+3})
    v_add_f32 v6, v6, abs(v{O+4})
    v_add_f32 v7, v7, abs(v{O+5})
    v_add_f32 v6, v6, abs(v{O+6})
    v_add_f32 v7, v7, abs(v{O+7})
    v_add_f32 v6, v6, abs(v{O+8})
    v_add_f32 v7, v7, abs(v{O+9})
    v_add_f32 v6, v6, abs(v{O+10})
    v_add_f32 v7, v7, abs(v{O+11})
    v_add_f32 v6, v6, v7
    v_cmp_ngt_f32 vcc, {f32(2.0**64)}, v{O+12}
    s_mov_b64 s[10:11], vcc
    v_cmp_ngt_f32 vcc, {f32(2.0**126)}, v6
    s_or_b64 s[10:11], s[10:11], vcc
    s_cbranch_scc1 F_slow
    F_out:
    v_rcp_f32 v6, v{O+12}
    s_nop 0
    """)
    for r in range(12): A(f"v_mul_f32 v{O+r}, v{O+r}, v6")
    for e in range(6): A(f"v_cvt_pk_bf16_f32 v{O+e}, v{O+2*e}, v{O+2*e+1}")
    A(f"buffer_store_dwordx4 {vr(O,4)}, v16, s[20:23], s44 offen sc1")
    A("s_mov_b32 exec_hi, 0")
    A(f"buffer_store_dwordx2 {vr(O+4,2)}, v17, s[20:23], s45 offen sc1")
    A("s_mov_b32 exec_hi, -1")
    vm.op("o"); vm.op("o")
    ACC, WF, AF, RA, XR = 8, 28, 68, 108, 110
    A(f"""
    s_lshr_b32 s60, s{S_CBK}, 2
    s_xor_b32 s60, s60, s{S_KH}
    s_mul_i32 s10, s60, 51200
    v_add_u32 v{RA}, s10, v{L16}
    s_mul_i32 s31, s{S_RT16}, 20480
    s_mul_i32 s11, s60, 10240
    s_add_u32 s31, s31, s11
    s_add_u32 s31, s31, s{S_GB}
    s_mov_b32 s28, 0x3f803f80
    """)
    stamp(A, 4)
    def rdC(k):
        b = WF + 20*(k & 1)
        for ct in range(5): A(f"ds_read_b128 {vr(b+4*ct,4)}, v{RA} offset:{k*5120+ct*1024}")
    A(f"""
    s_waitcnt vmcnt(0)
    s_barrier
    s_cmp_lg_u32 s{S_W}, 4
    s_cbranch_scc1 F_s1_o
    s_lshl_b32 s10, s{S_QB}, 12
    s_lshl_b32 s11, s{S_HD}, 7
    s_add_u32 s10, s10, s11
    s_add_u32 s10, s10, {FO}
    v_mov_b32 v6, s{S_TAG}
    v_mov_b32 v7, s{S_TAG+1}
    v_mov_b32 v5, 0
    s_mov_b64 exec, 1
    buffer_store_dwordx2 v[6:7], v5, s[20:23], s10 offen sc1
    s_mov_b64 exec, -1
    F_s1_o:
    """)
    rdC(0); rdC(1)
    A(f"""
    s_cmp_eq_u32 s{S_KH}, 0
    s_cbranch_scc1 F_s1_a
    v_and_b32 v5, 15, v2
    v_mul_u32_u24 v5, 160, v5
    v_lshrrev_b32 v6, 4, v2
    v_lshl_add_u32 v5, v6, 3, v5
    s_mul_i32 s10, s{S_RT}, 2560
    s_add_u32 s10, s10, {XL}
    v_add_u32 v5, s10, v5
    """)
    for ct in range(5): A(f"ds_read_b64 {vr(XR+2*ct,2)}, v5 offset:{32*ct}")
    A("s_waitcnt lgkmcnt(0)")
    for ct in range(5):
        a = ACC + 4*ct
        A(f"""
        v_lshlrev_b32 v{a}, 16, v{XR+2*ct}
        v_and_b32 v{a+1}, 0xffff0000, v{XR+2*ct}
        v_lshlrev_b32 v{a+2}, 16, v{XR+2*ct+1}
        v_and_b32 v{a+3}, 0xffff0000, v{XR+2*ct+1}
        """)
    A(f"""
    s_cmp_lg_u32 s{S_W}, 4
    s_cbranch_scc1 F_s1_done
    """)
    A(f"""
    v_lshlrev_b32 v5, 7, v3
    s_lshl_b32 s10, s{S_G}, 12
    s_add_u32 s10, s10, {FO}
    """)
    poll(A, "F_s1", 5, "s10", 0, acquire=False)
    A(f"""
    s_branch F_s1_done
    F_s1_a:
    v_mov_b32 v8, 0
    v_mov_b32 v9, 0
    v_mov_b32 v10, 0
    s_lshl_b32 s10, s{S_W}, 2
    s_add_u32 s10, s10, {CSP}
    v_lshl_add_u32 v7, v2, 4, s10
    """)
    for k in range(10):
        for d in range(4):
            for t in range(3):
                A(f"v_dot2c_f32_bf16 v{8+t}, s28, v{PK+12*k+4*t+d}")
    A("s_nop 2")
    for t in range(3): A(f"ds_write_b32 v7, v{8+t} offset:{1024*t}")
    A("s_waitcnt lgkmcnt(0)")
    for r in range(20): A(f"v_mov_b32 v{ACC+r}, 0")
    A("F_s1_done:")
    A("s_barrier")
    stamp(A, 5)
    for ks in range(10):
        A(f"buffer_load_dwordx4 {vr(AF+4*ks,4)}, v{L16}, s[20:23], s31 offen offset:{(ks%4)*1024} sc1")
        if ks % 4 == 3: A("s_add_u32 s31, s31, 4096")
    CSO = 104
    PT = 88
    A(f"""
    s_mul_i32 s10, s{S_RT}, 5120
    s_add_u32 s10, s10, {RED}
    v_add_u32 v1, s10, v{L16}
    """)
    def stepC(k):
        b = WF + 20*(k & 1)
        for ct in range(5):
            A(f"v_mfma_f32_16x16x32_bf16 {vr(ACC+4*ct,4)}, {vr(b+4*ct,4)}, {vr(AF+4*k,4)}, {vr(ACC+4*ct,4)}")
    for k in range(8):
        A(f"s_waitcnt vmcnt({9-k}) lgkmcnt(5)")
        stepC(k)
        rdC(k+2)
    A(f"s_cmp_eq_u32 s{S_KH}, 1")
    A("s_cbranch_scc1 F_cb")
    A("s_waitcnt vmcnt(1) lgkmcnt(5)")
    stepC(8)
    A("s_waitcnt vmcnt(0) lgkmcnt(0)")
    stepC(9)
    stamp(A, 6)
    A(f"""
    s_mul_i32 s10, s{S_W}, 30720
    v_add_u32 v7, s10, v{L16}
    v_add_u32 v6, {CSP}, v{L16}
    s_nop 4
    """)
    for ct in range(5): A(f"ds_write_b128 v1, {vr(ACC+4*ct,4)} offset:{1024*ct}")
    for t in range(3): A(f"ds_read_b128 {vr(WF+4*t,4)}, v6 offset:{1024*t}")
    A("s_waitcnt lgkmcnt(0)")
    A("s_barrier")
    A("s_mov_b32 s10, 0x07060302")
    for t in range(3):
        w = WF + 4*t
        A(f"""
        v_add_f32 v{w}, v{w}, v{w+1}
        v_add_f32 v{w+2}, v{w+2}, v{w+3}
        v_add_f32 v{w}, v{w}, v{w+2}
        v_and_b32 v6, 0xffff0000, v{w}
        v_sub_f32 v6, v{w}, v6
        v_perm_b32 v{CSO+2*t}, v6, v{w}, s10
        v_perm_b32 v{CSO+2*t+1}, v6, v{w}, s10
        """)
    ACCD, WFD, AFD, STT, RAD, GST = 8, 128, 164, 228, 111, 110
    A(f"""
    v_add_u32 v{RAD}, 61440, v{L16}
    s_mul_i32 s31, s{S_W}, 81920
    s_add_u32 s31, s31, {G_H}
    s_add_u32 s31, s31, s{S_GB}
    s_add_u32 s29, s31, 40960
    v_lshlrev_b32 v5, 3, v3
    v_lshl_add_u32 v1, v4, 13, v5         ; stats voffset: h*4*2048 + t*8
    s_lshl_b32 s30, s{S_W}, 9
    s_add_u32 s30, s30, {G_ST}
    s_add_u32 s30, s30, s{S_GB}
    s_lshl_b32 s48, s{S_W}, 8
    s_add_u32 s48, s48, s{S_FL}
    s_barrier
    """)
    for j in range(30): A(f"ds_write_b128 v7, {vr(PK+4*j,4)} offset:{1024*j}")
    stamp(A, 7)
    poll(A, "F_s2", L4, "s48", 0)
    A("s_waitcnt lgkmcnt(0)")
    NR = 8
    vm.clear()
    nld = [0]
    def ldA(i):
        k = nld[0]
        A(f"buffer_load_dwordx4 {vr(AFD+8*(k%NR)+4*i,4)}, v{L16}, s[20:23], s{31 if i == 0 else 29} offen offset:{(k%4)*1024} sc1")
        vm.op(f"a{k}_{i}")
        if i == 1:
            if k % 4 == 3:
                A("s_add_u32 s31, s31, 4096"); A("s_add_u32 s29, s29, 4096")
            nld[0] += 1
    def rdD(ks, t):
        b = WFD + 12*(ks % 3)
        if ks < 20: A(f"ds_read_b128 {vr(b+4*t,4)}, v{L16} offset:{ks*3072+t*1024}")
        else:       A(f"ds_read_b128 {vr(b+4*t,4)}, v{RAD} offset:{(ks-20)*3072+t*1024}")
    for k in range(4): ldA(0); ldA(1)
    A("s_barrier")
    stamp(A, 8)
    for k in range(2):
        for t in range(3): rdD(k, t)
    c1 = -2.0*math.sqrt(2/math.pi)*math.log2(math.e)
    c3 = c1*0.044715
    stl = []
    for i in range(2):
        for c in range(4):
            so = "s30" if c < 2 else "s46"
            stl.append(f"buffer_load_dwordx2 {vr(STT+8*i+2*c,2)}, v1, s[20:23], {so} offen offset:{2048*(c&1)+256*i} sc1")
    A("s_add_u32 s46, s30, 4096")
    side = ""
    for i in range(2):
        S_ = STT + 8*i
        side += f"""
        v_add_f32 v{S_}, v{S_}, v{S_+2}
        v_add_f32 v{S_+1}, v{S_+1}, v{S_+3}
        v_add_f32 v{S_+4}, v{S_+4}, v{S_+6}
        v_add_f32 v{S_+5}, v{S_+5}, v{S_+7}
        v_add_f32 v{S_}, v{S_}, v{S_+4}
        v_add_f32 v{S_+1}, v{S_+1}, v{S_+5}
        v_mov_b32 v{S_+2}, v{S_}
        v_mov_b32 v{S_+3}, v{S_+1}
        s_nop 1
        v_permlane32_swap_b32 v{S_}, v{S_+2}
        v_permlane32_swap_b32 v{S_+1}, v{S_+3}
        s_nop 1
        v_add_f32 v{S_}, v{S_}, v{S_+2}
        v_add_f32 v{S_+1}, v{S_+1}, v{S_+3}
        v_mul_f32 v{S_}, {f32(-1/640)}, v{S_}
        v_mul_f32 v{S_+1}, {f32(1/640)}, v{S_+1}
        v_fma_f32 v{S_+1}, -v{S_}, v{S_}, v{S_+1}
        v_max_f32 v{S_+1}, 0, v{S_+1}
        v_add_f32 v{S_+2}, {f32(EPS)}, v{S_+1}
        v_rsq_f32 v{S_+1}, v{S_+2}
        s_mov_b32 s11, 0x03020302
        v_and_b32 v5, 0xffff0000, v{S_}
        v_sub_f32 v5, v{S_}, v5
        v_perm_b32 v{S_+6}, v{S_}, v{S_}, s11
        v_perm_b32 v{S_+7}, v5, v5, s11
        v_mul_f32 v{S_+4}, {f32(c1)}, v{S_+1}
        v_mul_f32 v{S_+5}, v{S_+1}, v{S_+1}
        v_mul_f32 v{S_+5}, v{S_+5}, v{S_+1}
        v_mul_f32 v{S_+5}, {f32(c3)}, v{S_+5}
        """
    side += f"""
    v_and_b32 v5, 15, v2
    v_lshlrev_b32 v5, 4, v5
    v_lshl_add_u32 v5, v4, 8, v5
    v_bfe_u32 v6, v2, 4, 1
    v_mul_u32_u24 v6, 49152, v6
    v_add_u32 v{GST}, v5, v6
    s_mul_i32 s46, s{S_W}, {2*98304}
    s_mul_i32 s11, s{S_IDX}, 1536
    s_add_u32 s46, s46, s11
    s_add_u32 s46, s46, {G_G}
    s_add_u32 s46, s46, s{S_GB}
    s_add_u32 s47, s46, 98304
    """
    side = [l.strip() for l in side.split("\n") if l.strip()]
    for ks in range(40):
        b = WFD + 12*(ks % 3)
        for i in range(2):
            a = AFD + 8*(ks % NR) + 4*i
            lg = f" lgkmcnt({3 if ks < 39 else 0})" if i == 0 else ""
            A(f"s_waitcnt vmcnt({vm.need(f'a{ks}_{i}')}){lg}")
            for t in range(3):
                acc = vr(ACCD+48*i+16*t, 16)
                A(f"v_mfma_f32_32x32x16_bf16 {acc}, {vr(b+4*t,4)}, {vr(a,4)}, {'0' if ks == 0 else acc}")
                if i == 0 and ks + 2 < 40: rdD(ks+2, t)
                if i == 1:
                    lim = min(40, ks + NR - 1 + 0)
                    if t < 2 and nld[0] < lim: ldA(t)
                    if t == 2:
                        if ks < 4 and nld[0] < lim: ldA(0); ldA(1)
                        elif 4 <= ks < 12: A(stl.pop(0)); vm.op("st")
                if ks >= 20:
                    if side: A(side.pop(0))
        if ks == 36:
            assert not side
            for i in range(2):
                for t in range(3):
                    acc = vr(ACCD+48*i+16*t, 16)
                    A(f"v_mfma_f32_32x32x8_bf16 {acc}, {vr(CSO+2*t,2)}, {vr(STT+8*i+6,2)}, {acc}")
    assert nld[0] == 40
    stamp(A, 9)
    A("s_barrier")
    A("s_nop 6")
    E = WFD
    for i in range(2):
        AA = vr(STT+8*i+4, 2); IA = vr(STT+8*i+2, 2)
        for t in range(3):
            g = ACCD + 48*i + 16*t; u = g + 8
            R4 = range(0, 8, 2)
            for e in R4: A(f"v_pk_mul_f32 {vr(E+e,2)}, {vr(g+e,2)}, {vr(g+e,2)}")
            for e in R4: A(f"v_pk_fma_f32 {vr(E+e,2)}, {vr(E+e,2)}, {AA}, {AA} op_sel:[0,1,0] op_sel_hi:[1,1,0]")
            for e in R4: A(f"v_pk_mul_f32 {vr(E+e,2)}, {vr(E+e,2)}, {vr(g+e,2)}")
            for e in range(8): A(f"v_exp_f32 v{E+e}, v{E+e}")
            for e in R4: A(f"v_pk_mul_f32 {vr(g+e,2)}, {vr(g+e,2)}, {vr(u+e,2)}")
            for e in R4: A(f"v_pk_fma_f32 {vr(E+e,2)}, {vr(E+e,2)}, {IA}, {IA} op_sel_hi:[1,0,0]")
            for e in range(8): A(f"v_rcp_f32 v{E+e}, v{E+e}")
            A("s_nop 0")
            for e in R4: A(f"v_pk_mul_f32 {vr(g+e,2)}, {vr(g+e,2)}, {vr(E+e,2)}")
            for e in range(4): A(f"v_cvt_pk_bf16_f32 v{u+e}, v{g+2*e}, v{g+2*e+1}")
            A(f"buffer_store_dwordx4 {vr(u,4)}, v{GST}, s[20:23], s{46+i} offen offset:{512*t}")
    stamp(A, 10)
    def e_setup():
        for i in range(4):
            A(f"""
            s_add_u32 s10, s{S_RT}, {i}
            s_and_b32 s10, s10, 3
            s_mul_i32 s{44+i}, s10, 5120
            s_lshl_b32 s11, s{S_RT4}, 2
            s_add_u32 s10, s10, s11
            s_mul_i32 s10, s10, 49152
            s_mul_i32 s11, s{S_W}, 6144
            s_add_u32 s10, s10, s11
            s_add_u32 s{28+i}, s10, s{S_GB}
            """)
        A(f"""
        v_and_b32 v7, 15, v2
        v_mul_u32_u24 v7, 320, v7
        v_lshrrev_b32 v5, 4, v2
        v_bfe_u32 v6, v2, 1, 2
        v_xor_b32 v5, v5, v6
        v_lshl_add_u32 v7, v5, 4, v7
        s_mul_i32 s10, s{S_W}, 20480
        v_add_u32 v7, s10, v7
        """)
        for i in range(4): A(f"v_add_u32 v{WA+i}, s{44+i}, v7")
        for rnd in range(3):
            A(f"""
            v_add_u32 v5, {512*rnd}, v0
            v_mul_u32_u24 v6, 3277, v5
            v_lshrrev_b32 v6, 16, v6
            v_mul_u32_u24 v7, 20, v6
            v_sub_u32 v5, v5, v7
            v_bfe_u32 v1, v6, 1, 2
            v_xor_b32 v1, v1, v5
            v_mul_u32_u24 v7, 320, v6
            v_lshl_add_u32 v{IL+rnd}, v1, 4, v7
            v_mul_u32_u24 v7, 1280, v6
            v_lshl_add_u32 v{OA+rnd}, v5, 3, v7
            """)
    ACE, AR, WA, IL, OA = 8, 48, 248, 252, 121
    A(f"""
    s_mul_i32 s10, s{S_W}, 10240
    s_add_u32 s10, s10, {RED}
    v_add_u32 v7, s10, v{L16}
    s_lshl_b32 s10, s{S_IDX}, 3
    s_add_u32 s48, s48, s10
    s_add_u32 s48, s48, 1024
    s_mul_i32 s10, s{S_W}, 30720
    s_add_u32 s65, s65, s10
    s_add_u32 s65, s65, 20480
    """)
    for j in range(10): A(f"ds_read_b128 {vr(PK+4*j,4)}, v7 offset:{1024*j}")
    signal(A, "F_g3", "s48")
    for j in range(20, 30 if NBR == 0 else 20):
        A(f"buffer_load_dwordx4 {vr(PK+4*j,4)}, v{L16}, s[20:23], s65 offen offset:{(j%4)*1024}")
        if j % 4 == 3: A("s_add_u32 s65, s65, 4096")
    for r in range(20): A(f"v_mov_b32 v{8+r}, 0")
    e_setup()
    A(f"""
    s_mul_i32 s10, s{S_W}, 20480
    v_add_u32 v7, s10, v{L16}
    s_waitcnt lgkmcnt(0)
    s_barrier
    """)
    for j in range(10, 20 if NBR == 0 else 30):
        A(f"ds_read_b128 {vr(PK+4*j,4)}, v7 offset:{1024*(j-10)}")
    A("s_branch F_e")
    A("F_cb:")
    A("s_barrier")
    for ct in range(5): A(f"ds_read_b128 {vr(AF+4*ct,4)}, v1 offset:{1024*ct}")
    A("s_waitcnt vmcnt(1) lgkmcnt(10)")
    stepC(8)
    A("s_waitcnt vmcnt(0) lgkmcnt(5)")
    stepC(9)
    stamp(A, 6)
    SV = AF + 20
    A(f"""
    s_barrier
    s_lshr_b32 s10, s{S_RT16}, 1
    s_mul_i32 s10, s10, 40
    s_mul_i32 s11, s{S_CBK}, 5
    s_add_u32 s10, s10, s11
    s_lshl_b32 s10, s10, 10
    s_add_u32 s10, s10, {G_H}
    s_add_u32 s10, s10, s{S_GB}
    s_and_b32 s11, s{S_RT16}, 1
    s_lshl_b32 s11, s11, 8
    s_add_u32 s10, s10, s11
    s_add_u32 s11, s10, 4096
    v_and_b32 v5, 15, v2
    v_lshlrev_b32 v7, 4, v5
    v_lshl_add_u32 v7, v4, 9, v7
    v_bfe_u32 v6, v2, 4, 1
    v_lshl_add_u32 v7, v6, 3, v7
    s_waitcnt lgkmcnt(0)
    """)
    for ct in range(5):
        a = ACC + 4*ct
        A(f"v_pk_add_f32 {vr(a,2)}, {vr(a,2)}, {vr(AF+4*ct,2)}")
        A(f"v_pk_add_f32 {vr(a+2,2)}, {vr(a+2,2)}, {vr(AF+4*ct+2,2)}")
        A(f"v_cvt_pk_bf16_f32 v{XR+2*ct}, v{a}, v{a+1}")
        A(f"v_cvt_pk_bf16_f32 v{XR+2*ct+1}, v{a+2}, v{a+3}")
        if ct < 4: A(f"buffer_store_dwordx2 {vr(XR+2*ct,2)}, v7, s[20:23], s10 offen offset:{1024*ct}")
        else:      A(f"buffer_store_dwordx2 {vr(XR+2*ct,2)}, v7, s[20:23], s11 offen")
    A(f"""
    v_mov_b32 v{SV+1}, 0
    v_mov_b32 v{SV+2}, 0
    v_lshlrev_b32 v5, 3, v5
    v_lshl_add_u32 v{SV}, v4, 2, v5       ; stats voffset: row*8 + (lane>>5)*4
    s_lshl_b32 s31, s{S_CBK}, 11
    s_lshl_b32 s29, s{S_RT16}, 7
    s_add_u32 s31, s31, s29
    s_add_u32 s31, s31, {G_ST}
    s_add_u32 s31, s31, s{S_GB}
    """)
    for e in range(10):
        A(f"v_dot2c_f32_bf16 v{SV+1}, s28, v{XR+e}")
        A(f"v_dot2c_f32_bf16 v{SV+2}, v{XR+e}, v{XR+e}")
    A(f"""
    s_lshl_b32 s48, s{S_RT4}, 8
    s_add_u32 s48, s48, s{S_FL}
    s_lshl_b32 s10, s{S_CBK}, 5
    s_lshl_b32 s11, s{S_RT}, 3
    v_permlane32_swap_b32 v{SV+1}, v{SV+2}
    s_add_u32 s10, s10, s11
    s_add_u32 s10, s10, s48
    v_add_f32 v{SV+1}, v{SV+1}, v{SV+2}
    v_mov_b32 v{SV+2}, v{SV+1}
    s_nop 0
    s_nop 0
    v_permlane16_swap_b32 v{SV+1}, v{SV+2}
    s_nop 1
    v_add_f32 v{SV+1}, v{SV+1}, v{SV+2}
    buffer_store_dword v{SV+1}, v{SV}, s[20:23], s31 offen
    """)
    for e in range(10):
        A(f"v_lshlrev_b32 v{ACC+2*e}, 16, v{XR+e}")
        A(f"v_and_b32 v{ACC+2*e+1}, 0xffff0000, v{XR+e}")
    signal(A, "F_g2", "s10")
    stamp(A, 7)
    e_setup()
    A("s_barrier")
    stamp(A, 8)
    A(f"""
    s_mul_i32 s10, s{S_RT}, 30720
    s_add_u32 s65, s65, s10
    s_mul_i32 s67, s{S_RT}, 10240
    s_add_u32 s67, s67, {RED}
    s_mov_b32 s49, {1 if 'nob1' in OPT else 10}
    """)
    if 'wb2' in OPT:
        A(f"""
        s_lshl_b32 s10, s{S_IDX}, 3
        s_add_u32 s10, s10, s{S_W}
        s_cmp_lg_u32 s10, 7
        s_cbranch_scc1 F_nowb2
        buffer_wbl2 sc1
        F_nowb2:
        """)
    A(f"""
    F_b1:
    s_mov_b32 m0, s67
    s_add_u32 s67, s67, 1024
    buffer_load_dwordx4 v{L16}, s[20:23], s65 offen sc1 lds
    s_add_u32 s65, s65, 1024
    s_sub_u32 s49, s49, 1
    s_cmp_lg_u32 s49, 0
    s_waitcnt vmcnt({BIF})
    s_cbranch_scc1 F_b1
    s_mul_i32 s67, s{S_RT}, 20480
    s_mov_b32 s49, 5
    v_add_u32 v7, s67, v{L16}
    s_add_u32 s50, s65, {1024*(20-NBR)}
    """)
    for j in range(NBR):
        A(f"buffer_load_dwordx4 {vr(28+4*j,4)}, v{L16}, s[20:23], s50 offen offset:{(j%4)*1024} sc1")
        if j % 4 == 3: A("s_add_u32 s50, s50, 4096")
        A(f"s_waitcnt vmcnt({BIF})")
    A("s_waitcnt vmcnt(0)")
    stamp(A, 9)
    A("s_barrier")
    if NBR < 20:
        A(f"""
        F_b2:
        s_mov_b32 m0, s67
        s_add_u32 s67, s67, 2048
        buffer_load_dwordx4 v{L16}, s[20:23], s65 offen sc1 lds
        buffer_load_dwordx4 v{L16}, s[20:23], s65 offen offset:1024 sc1 lds
        s_add_u32 s65, s65, 2048
        s_sub_u32 s49, s49, 1
        s_cmp_lg_u32 s49, 0
        s_waitcnt vmcnt(2)
        s_cbranch_scc1 F_b2
        """)
    for j in range(NBR): A(f"ds_write_b128 v7, {vr(28+4*j,4)} offset:{1024*(20-NBR+j)}")
    A("s_waitcnt vmcnt(0) lgkmcnt(0)")
    stamp(A, 10)
    A(f"""
    s_setprio 1
    s_cmp_lg_u32 s{S_W}, 4
    s_cbranch_scc1 F_s3_done
    """)
    poll(A, "F_s3", L4, "s48", 1024)
    A("F_s3_done:")
    A("s_barrier")
    A("F_e:")
    stamp(A, 11)
    if 'wb3' in OPT:
        A(f"""
        s_lshl_b32 s10, s{S_IDX}, 3
        s_add_u32 s10, s10, s{S_W}
        s_cmp_lg_u32 s10, 0
        s_cbranch_scc1 F_nowb
        buffer_wbl2 sc1
        F_nowb:
        """)
    vm.clear()
    NE = 18
    nle = [0]
    def ldE():
        n = nle[0]
        if n >= 24: return
        rt, s_ = divmod(n, 6)
        if s_ == 4: A(f"s_add_u32 s{28+rt}, s{28+rt}, 4096")
        A(f"buffer_load_dwordx4 {vr(AR+4*(n%NE),4)}, v{L16}, s[20:23], s{28+rt} offen offset:{(s_%4)*1024} sc1")
        vm.op(f"a{n}"); nle[0] += 1
    for _ in range(6): ldE()
    A("s_waitcnt lgkmcnt(0)")
    est(4)
    pend = []
    for n in range(24):
        rt, s_ = divmod(n, 6)
        A(f"s_waitcnt vmcnt({vm.need(f'a{n}')})")
        for ct in range(5):
            acc = vr(ACE + 20*(rt & 1) + 4*ct, 4)
            c = "0" if (s_ == 0 and rt > 0) else acc
            A(f"v_mfma_f32_16x16x32_bf16 {acc}, {vr(PK+20*s_+4*ct,4)}, {vr(AR+4*(n%NE),4)}, {c}")
            if ct == 1 and nle[0] < n + NE: ldE()
            if ct == 3 and n < 8 and nle[0] < n + NE: ldE()
            if ct == 4 and pend and s_ >= 1: A(pend.pop(0))
        if s_ == 5:
            pend = [f"ds_write_b128 v{WA+rt}, {vr(ACE+20*(rt&1)+4*ct,4)} offset:{64*ct}" for ct in range(5)]
    est(5)
    A("s_setprio 0")
    for rnd in range(3):
        A(f"v_add_u32 v{AR+2*rnd}, 61440, v{IL+rnd}")
        A(f"v_add_u32 v{AR+2*rnd+1}, 122880, v{IL+rnd}")
    A("s_nop 1")
    for p_ in pend: A(p_)
    A("s_waitcnt lgkmcnt(0)")
    est(6)
    A("s_barrier")
    est(7)
    def fin_read(rnd):
        b = 128 + 32*rnd
        for p in range(8):
            ad = (IL+rnd, AR+2*rnd, AR+2*rnd+1)[p//3]
            A(f"ds_read_b128 {vr(b+4*p,4)}, v{ad} offset:{20480*(p%3)}")
    def fin_sum(rnd):
        b = 128 + 32*rnd
        for st_ in (16, 8, 4):
            for o in range(0, st_, 2):
                A(f"v_pk_add_f32 {vr(b+o,2)}, {vr(b+o,2)}, {vr(b+st_+o,2)}")
        A(f"""
        v_cvt_pk_bf16_f32 v{b}, v{b}, v{b+1}
        v_cvt_pk_bf16_f32 v{b+1}, v{b+2}, v{b+3}
        buffer_store_dwordx2 {vr(b,2)}, v{OA+rnd}, s[40:43], s69 offen {'sc1' if 'osc1' in OPT else 'nt' if 'ont' in OPT else ''}
        """)
    fin_read(0)
    A("s_waitcnt lgkmcnt(1)")
    fin_read(1)
    A("s_waitcnt lgkmcnt(8)")
    fin_sum(0)
    A(f"s_cmp_ge_u32 s{S_W}, 4")
    A("s_cbranch_scc1 F_f1")
    A("s_waitcnt lgkmcnt(1)")
    fin_read(2)
    A("s_waitcnt lgkmcnt(8)")
    fin_sum(1)
    A("s_waitcnt lgkmcnt(0)")
    fin_sum(2)
    A("s_branch F_fin")
    A("F_f1:")
    A("s_waitcnt lgkmcnt(0)")
    fin_sum(1)
    A("F_fin:")
    if asmlib.STAMPS:
        A("s_waitcnt vmcnt(0)")
        asmlib.stamp(A, 1)
    stamp_flush(A, 1, 12)
    A("F_end:")
    A("s_endpgm")
    A("F_slow:")
    KS0, KS1 = 44, 20
    A(f"""
    v_lshlrev_b32 v{AK1}, 3, v3
    v_add_u32 v{AK1}, 1024, v{AK1}
    v_subrev_u32 v{AV}, {baseV}, v{AV}
    v_mov_b32 v5, 0xff800000
    s_mov_b32 s31, 0
    s_mov_b32 s10, s29
    """)
    for r in range(16): A(f"v_mov_b32 v{O+r}, 0")
    A("F_sloop:")
    A(f"""
    buffer_load_dwordx4 {vr(KS0,4)}, v{L16}, s[20:23], s10 offen sc1
    buffer_load_dwordx2 {vr(KS1,2)}, v{AK1}, s[20:23], s10 offen sc1
    s_mov_b64 exec, s[32:33]
    buffer_load_dwordx4 {vr(V0,4)}, v{AV}, s[20:23], s10 offen sc1
    buffer_load_dwordx4 {vr(V1,4)}, v{AV}, s[20:23], s10 offen offset:640 sc1
    s_mov_b64 exec, -1
    s_waitcnt vmcnt(0)
    v_mfma_f32_32x32x16_bf16 {vr(SA,16)}, {vr(KS0,4)}, {vr(Q0,4)}, 0
    v_mfma_f32_32x32x8_bf16 {vr(SA,16)}, {vr(KS1,2)}, {vr(Q1,2)}, {vr(SA,16)}
    s_nop 11
    v_max3_f32 v6, v{SA}, v{SA+1}, v5
    """)
    for r in range(2, 16, 2): A(f"v_max3_f32 v6, v{SA+r}, v{SA+r+1}, v6")
    A(f"""
    v_mov_b32 v7, v6
    s_nop 1
    v_permlane32_swap_b32 v6, v7
    s_nop 1
    v_max_f32 v6, v6, v7
    v_sub_f32 v7, v5, v6
    v_exp_f32 v7, v7
    v_mov_b32 v5, v6
    """)
    for r in range(16): A(f"v_mul_f32 v{O+r}, v{O+r}, v7")
    for r in range(16): A(f"v_sub_f32 v{SA+r}, v{SA+r}, v6")
    for r in range(16): A(f"v_exp_f32 v{SA+r}, v{SA+r}")
    A("s_nop 0")
    for e in range(8): A(f"v_cvt_pk_bf16_f32 v{P0+e}, v{SA+2*e}, v{SA+2*e+1}")
    A(f"""
    s_nop 1
    v_mfma_f32_32x32x16_bf16 {vr(O,16)}, {vr(V0,4)}, {vr(P0,4)}, {vr(O,16)}
    v_mfma_f32_32x32x16_bf16 {vr(O,16)}, {vr(V1,4)}, {vr(P1,4)}, {vr(O,16)}
    s_add_u32 s10, s10, 2560
    s_add_u32 s31, s31, 1
    s_cmp_lt_u32 s31, 64
    s_nop 8
    s_cbranch_scc1 F_sloop
    s_nop 3
    s_branch F_out
    F_kend:
    """)
    return dict(name=name, grid=256, block=512, lds=163840, nvgpr=256)
```

```python
from asmlib import *
import asmlib
from layout import *
from main2 import VM, S_TAG, S_FL, S_XCC, S_MODE, signal
import os
OPT = set(os.environ.get('OPT','').split(','))

def gen_phase_a(A):
    NST, STG = 3, 43008
    TAB = NST * STG
    stamp_rt(A,0); stamp(A,0)
    A(f"""
    s_cmp_ge_u32 s2, 256
    s_cbranch_scc1 F_end
    s_load_dwordx4 s[4:7], s[0:1], 0
    s_load_dwordx4 s[60:63], s[0:1], 64
    s_getpc_b64 s[10:11]
    A_pc:
    s_lshr_b32 s3, s2, 3
    s_lshl_b32 s3, s3, 11
    v_lshlrev_b32 v1, 7, v0
    v_add_u32 v1, s3, v1
    v_min_u32 v1, F_kend-A_pc-4, v1
    v_cmp_gt_u32 vcc, 16, v0
    s_and_saveexec_b64 s[12:13], vcc
    s_cbranch_execz A_nopf
    global_load_dword v255, v1, s[10:11]
    A_nopf:
    s_mov_b64 exec, s[12:13]
    v_lshrrev_b32 v1, 6, v0
    v_and_b32 v2, 63, v0              ; lane
    s_and_b32 s3, s2, 7               ; class
    v_readfirstlane_b32 s24, v1       ; wave
    s_lshr_b32 s10, s2, 3
    s_mul_i32 s27, s10, 11
    s_lshr_b32 s27, s27, 5
    s_mul_i32 s11, s27, 3
    s_sub_u32 s28, s10, s11           ; type: 0 q, 1 k, 2 v
    v_and_b32 v3, 31, v2              ; t
    v_lshrrev_b32 v4, 5, v2           ; h
    s_mov_b32 s22, {WS_USED}
    s_mov_b32 s23, 0x20000
    s_mov_b32 s14, {2048*640*2}
    s_mov_b32 s15, 0x20000
    s_mov_b32 s18, {640*1920*2}
    s_mov_b32 s19, 0x20000
    s_sub_u32 s25, s24, 4             ; lw
    s_lshl_b32 s{S_FL}, s3, 12
    s_add_u32 s{S_FL}, s{S_FL}, {FL}
    s_getreg_b32 s{S_XCC}, hwreg(HW_REG_XCC_ID)
    s_and_b32 s{S_XCC}, s{S_XCC}, 15
    s_cmp_ge_u32 s2, 192
    s_cbranch_scc1 A_pack
    s_cmp_lt_u32 s24, 4
    s_cbranch_scc1 A_comp
    s_mul_i32 s31, s28, 3
    s_add_u32 s31, s31, s27
    s_add_u32 s31, s31, s3
    s_sub_u32 s11, s31, 10
    s_cmp_ge_u32 s31, 10
    s_cselect_b32 s31, s11, s31
    s_sub_u32 s11, s31, 10
    s_cmp_ge_u32 s31, 10
    s_cselect_b32 s31, s11, s31
    s_lshl_b32 s29, s27, 2
    s_add_u32 s29, s29, s25
    s_mul_i32 s29, s29, {64*1280}
    s_mul_i32 s30, s25, {16*3840}
    s_mul_i32 s11, s28, 1280
    s_add_u32 s30, s30, s11
    s_mul_i32 s11, s3, 160
    s_add_u32 s30, s30, s11
    s_lshl_b32 s33, s25, 13
    s_mul_i32 s32, s25, {2560-8192}
    s_add_u32 s32, s32, 32768
    v_lshrrev_b32 v17, 3, v2
    v_mul_u32_u24 v5, 1280, v17
    v_lshrrev_b32 v17, 4, v2
    v_and_b32 v6, 7, v2
    v_xor_b32 v6, v6, v17
    v_lshl_add_u32 v8, v6, 4, v5
    v_xor_b32 v11, 64, v8
    s_cmp_eq_u32 s28, 2
    s_cselect_b32 s10, 0, 64
    s_cselect_b32 s11, 64, 0
    v_xor_b32 v9, s10, v8
    v_xor_b32 v10, s11, v8
    v_add_u32 v9, {8*1280-1024}, v9
    v_add_u32 v10, {16*1280-2048}, v10
    v_add_u32 v11, {24*1280-3072}, v11
    v_mul_u32_u24 v6, 205, v2
    v_lshrrev_b32 v6, 11, v6
    v_mul_u32_u24 v7, 10, v6
    v_sub_u32 v5, v2, v7
    v_mul_u32_u24 v6, 3840, v6
    v_lshl_add_u32 v12, v5, 4, v6
    v_add_u32 v13, {8*3840-640}, v12
    v_add_u32 v14, {4*3840-1280}, v12
    v_add_u32 v15, {12*3840-1920}, v12
    s_waitcnt lgkmcnt(0)
    s_mov_b32 s12, s4
    s_mov_b32 s13, s5
    s_mov_b32 s16, s6
    s_mov_b32 s17, s7
    s_mov_b32 s20, s62
    s_mov_b32 s21, s63
    s_branch A_l0
    A_dma:
    s_mul_i32 s11, s31, {64*3840}
    s_add_u32 m0, s33, s32
    s_add_u32 s11, s11, s30
    s_mov_b32 exec_hi, 0xff
    buffer_load_dwordx4 v12, s[16:19], s11 offen lds
    buffer_load_dwordx4 v13, s[16:19], s11 offen offset:640 lds
    buffer_load_dwordx4 v14, s[16:19], s11 offen offset:1280 lds
    buffer_load_dwordx4 v15, s[16:19], s11 offen offset:1920 lds
    s_mov_b32 exec_hi, -1
    s_lshl_b32 s10, s31, 7
    s_mov_b32 m0, s33
    s_add_u32 s10, s10, s29
    buffer_load_dwordx4 v8, s[12:15], s10 offen lds
    buffer_load_dwordx4 v9, s[12:15], s10 offen offset:1024 lds
    buffer_load_dwordx4 v10, s[12:15], s10 offen offset:2048 lds
    buffer_load_dwordx4 v11, s[12:15], s10 offen offset:3072 lds
    s_add_u32 m0, s33, 4096
    s_add_u32 s10, s10, {32*1280}
    buffer_load_dwordx4 v8, s[12:15], s10 offen lds
    buffer_load_dwordx4 v9, s[12:15], s10 offen offset:1024 lds
    buffer_load_dwordx4 v10, s[12:15], s10 offen offset:2048 lds
    buffer_load_dwordx4 v11, s[12:15], s10 offen offset:3072 lds
    s_add_u32 s31, s31, 1
    s_cmp_eq_u32 s31, 10
    s_cselect_b32 s31, 0, s31
    s_add_u32 s33, s33, {STG}
    s_sub_u32 s10, s33, {NST*STG}
    s_cmp_ge_u32 s33, {NST*STG}
    s_cselect_b32 s33, s10, s33
    s_setpc_b64 s[34:35]
    A_l0:
    """)
    vm = VM()
    def dma(c):
        A("s_call_b64 s[34:35], A_dma")
        for _ in range(12): vm.op(f"c{c}")
    def stats_load():
        A(f"""
        s_lshl_b32 s36, s2, 2
        s_add_u32 s36, s36, s25
        s_mul_i32 s37, s36, 2560
        v_mul_u32_u24 v5, 1280, v4
        v_lshl_add_u32 v5, v3, 4, v5
        v_cmp_gt_u32 vcc, 16, v3
        v_mov_b32 v6, 0x40000000
        buffer_load_dwordx4 v[32:35], v5, s[12:15], s37 offen
        v_cndmask_b32 v6, v6, v5, vcc
        buffer_load_dwordx4 v[36:39], v5, s[12:15], s37 offen offset:512
        buffer_load_dwordx4 v[40:43], v6, s[12:15], s37 offen offset:1024
        """)
    def stats_calc():
        A("s_mov_b32 s38, 0x3f803f80")
        A("v_mov_b32 v20, 0")
        A("v_mov_b32 v21, 0")
        for d in range(12):
            A(f"v_dot2c_f32_bf16 v20, s38, v{32+d}")
            A(f"v_dot2c_f32_bf16 v21, v{32+d}, v{32+d}")
        A("s_nop 3")
        for m in ("quad_perm:[1,0,3,2]", "quad_perm:[2,3,0,1]", "row_half_mirror", "row_mirror"):
            A(f"v_add_f32_dpp v20, v20, v20 {m} row_mask:0xf bank_mask:0xf")
            A(f"v_add_f32_dpp v21, v21, v21 {m} row_mask:0xf bank_mask:0xf")
            A("s_nop 1")
        A(f"""
        v_mov_b32 v22, v20
        v_mov_b32 v23, v21
        s_nop 1
        v_permlane16_swap_b32 v20, v22
        v_permlane16_swap_b32 v21, v23
        s_nop 1
        v_add_f32 v20, v20, v22
        v_add_f32 v21, v21, v23
        v_mul_f32 v20, {f32(1/640)}, v20
        v_mul_f32 v21, {f32(1/640)}, v21
        v_fma_f32 v21, -v20, v20, v21
        v_max_f32 v21, 0, v21
        v_add_f32 v21, {f32(EPS)}, v21
        v_rsq_f32 v22, v21
        s_lshl_b32 s36, s36, 5
        s_add_u32 s36, s36, {RS}
        v_lshlrev_b32 v5, 4, v4
        v_mul_f32 v23, v20, v22
        v_sub_f32 v23, 0, v23
        s_mov_b32 exec_lo, 1
        s_mov_b32 exec_hi, 1
        buffer_store_dwordx4 v[22:25], v5, s[20:23], s36 offen sc1
        s_mov_b64 exec, -1
        """)
    def dbg_srd(lab):
        A(f"""
        s_mov_b32 s56, s60
        s_mov_b32 s57, s61
        s_mov_b32 s58, 256
        s_mov_b32 s59, 0x20000
        v_mov_b32 v18, 0
        """)
        if lab:
            A(f"""
            s_cmp_lg_u32 s2, 0
            s_cbranch_scc1 {lab}
            s_cmp_lg_u32 s24, 4
            s_cbranch_scc1 {lab}
            s_memrealtime s[10:11]
            s_waitcnt lgkmcnt(0)
            s_or_b32 s11, s11, 0x80000000
            v_mov_b32 v24, s10
            v_mov_b32 v25, s11
            v_mov_b32 v26, 0
            v_mov_b32 v27, 0
            s_mov_b64 exec, 1
            buffer_atomic_cmpswap_x2 v[24:27], v18, s[56:59], 0 offen sc1
            s_mov_b64 exec, -1
            {lab}:
            """)
    def tag_load():
        A("buffer_load_dwordx2 v[24:25], v18, s[56:59], 0 offen sc1")
    def tag_check(lab):
        A(f"""
        s_mov_b32 s11, 0x40000
        {lab}:
        v_cmp_gt_i32 vcc, 0, v25
        s_cbranch_vccnz {lab}_ok
        buffer_load_dwordx2 v[24:25], v18, s[56:59], 0 offen sc1
        s_sub_u32 s11, s11, 1
        s_waitcnt vmcnt(0)
        s_cmp_lg_u32 s11, 0
        s_cbranch_scc1 {lab}
        {lab}_ok:
        v_readfirstlane_b32 s{S_TAG}, v24
        v_readfirstlane_b32 s{S_TAG+1}, v25
        """)
    def die_store(lab, wave):
        A(f"""
        s_cmp_lg_u32 s24, {wave}
        s_cbranch_scc1 {lab}
        v_mov_b32 v26, s{S_XCC}
        s_lshl_b32 s10, s2, 7
        s_add_u32 s10, s10, {FA}
        s_mov_b64 exec, 1
        buffer_store_dwordx4 v[24:27], v18, s[20:23], s10 offen sc1
        s_mov_b64 exec, -1
        {lab}:
        """)
    def die_addr():
        A(f"""
        v_lshlrev_b32 v16, 10, v3
        s_lshl_b32 s38, s3, 7
        s_add_u32 s38, s38, {FA}
        """)
    def die_mode():
        A(f"""
        v_cmp_ne_u32 vcc, s{S_XCC}, v38
        s_nop 1
        s_cmp_lg_u64 vcc, 0
        s_cselect_b32 s{S_MODE}, 1, 0
        """)
    stamp(A,1)
    dbg_srd("A_z1")
    dma(0); dma(1)
    stats_load(); vm.op("st"); vm.op("st"); vm.op("st")
    tag_load(); vm.op("st")
    stamp(A,2)
    for c in range(8):
        A(f"s_waitcnt vmcnt({vm.need(f'c{c}')})")
        A("s_barrier")
        dma(c+2)
        if c == 1:
            A(f"s_waitcnt vmcnt({vm.need('st')})")
            tag_check("A_tk")
            stats_calc(); vm.op("rs")
            die_store("A_ds", 4)
    die_addr()
    A(f"""
    s_lshl_b32 s37, s27, 2
    s_add_u32 s37, s37, s25
    s_lshl_b32 s37, s37, 10
    s_add_u32 s37, s37, {RS}
    v_lshlrev_b32 v19, 4, v2
    s_lshl_b32 s39, s28, 3
    s_add_u32 s39, s39, s3
    s_lshl_b32 s39, s39, 2
    s_add_u32 s39, s39, s25
    s_mul_i32 s39, s39, 160
    s_add_u32 s39, s39, {CSQ}
    v_min_u32 v5, 9, v3
    v_lshlrev_b32 v5, 4, v5
    v_mul_u32_u24 v6, {960*16}, v4
    v_add_u32 v17, v5, v6
    buffer_load_dwordx4 v[28:31], v19, s[20:23], s37 offen sc1
    buffer_load_dwordx4 v[32:35], v17, s[20:23], s39 offen sc1
    buffer_load_dwordx4 v[36:39], v16, s[20:23], s38 offen sc1
    v_lshlrev_b32 v6, 7, v3
    buffer_load_dword v40, v6, s[20:23], s{S_FL} offen sc1
    """)
    for _ in range(4): vm.op("fl")
    A(f"s_waitcnt vmcnt({vm.need('c8')})")
    A("s_barrier")
    A(f"""
    s_cmp_eq_u32 s28, 0
    s_cselect_b32 s10, {f32(QSCALE)}, 1.0
    s_lshl_b32 s11, s25, 8
    s_add_u32 s11, s11, {TAB}
    v_lshl_add_u32 v6, v2, 2, s11
    s_lshl_b32 s11, s25, 9
    s_add_u32 s11, s11, {TAB+2048}
    v_lshl_add_u32 v7, v2, 3, s11
    s_mul_i32 s11, s25, 80
    s_add_u32 s11, s11, {TAB+4096}
    v_lshrrev_b32 v5, 1, v5
    v_add_u32 v5, s11, v5
    v_mov_b32 v26, {TAB+4608}
    s_waitcnt vmcnt(4)
    s_barrier
    s_mov_b32 s11, 0x40000
    s_waitcnt vmcnt(0)
    A_rk:
    v_cmp_ne_u64 vcc, s[{S_TAG}:{S_TAG+1}], v[30:31]
    s_mov_b64 s[40:41], vcc
    v_cmp_ne_u64 vcc, s[{S_TAG}:{S_TAG+1}], v[34:35]
    s_or_b64 s[40:41], s[40:41], vcc
    v_cmp_ne_u64 vcc, s[{S_TAG}:{S_TAG+1}], v[36:37]
    s_or_b64 s[40:41], s[40:41], vcc
    s_cbranch_scc0 A_rk_ok
    buffer_load_dwordx4 v[28:31], v19, s[20:23], s37 offen sc1
    buffer_load_dwordx4 v[32:35], v17, s[20:23], s39 offen sc1
    buffer_load_dwordx4 v[36:39], v16, s[20:23], s38 offen sc1
    s_sub_u32 s11, s11, 1
    s_waitcnt vmcnt(0)
    s_cmp_lg_u32 s11, 0
    s_cbranch_scc1 A_rk
    A_rk_ok:
    """)
    die_mode()
    A(f"""
    v_mov_b32 v40, v32
    v_mov_b32 v41, v33
    v_mul_f32 v28, s10, v28
    v_mul_f32 v29, s10, v29
    v_permlane32_swap_b32 v32, v40
    v_permlane32_swap_b32 v33, v41
    v_mov_b32 v38, s{S_MODE}
    ds_write_b32 v6, v28
    ds_write_b32 v6, v29 offset:1024
    v_add_f32 v32, v32, v40
    v_add_f32 v33, v33, v41
    ds_write_b64 v7, v[28:29]
    ds_write_b128 v26, v[36:39]
    ds_write_b64 v5, v[32:33]
    s_waitcnt lgkmcnt(0)
    s_barrier
    """)
    stamp(A,3)
    stamp(A,4)
    A("s_branch F_main")
    A("A_comp:")
    RA0, RB, RB4 = 8, 10, 11
    XF, WF, ACC, SAD = 16, 48, 88, 168
    A(f"""
    s_mov_b32 s36, {STG}
    s_mov_b32 s34, 0
    v_and_b32 v12, 15, v2             ; i
    v_lshrrev_b32 v13, 4, v2          ; gq
    v_lshlrev_b32 v5, 4, v4
    v_bfe_u32 v6, v2, 4, 1
    v_lshl_add_u32 v5, v6, 2, v5
    v_bfe_u32 v6, v2, 2, 2
    v_add_u32 v5, v5, v6
    v_mul_u32_u24 v5, 160, v5
    v_add_u32 v{RB}, 32768, v5
    v_bfe_u32 v5, v2, 1, 3
    v_xor_b32 v5, v5, v13
    v_lshlrev_b32 v5, 4, v5
    s_lshl_b32 s10, s24, 13
    v_add_u32 v{RA0}, s10, v5
    s_lshl_b32 s43, s27, 2
    s_add_u32 s43, s43, s24
    s_lshl_b32 s48, s43, 3
    s_lshl_b32 s10, s28, 8
    s_add_u32 s48, s48, s10
    s_add_u32 s48, s48, s{S_FL}
    s_add_u32 s48, s48, 2048
    s_waitcnt lgkmcnt(0)
    s_mov_b32 s20, s62
    s_mov_b32 s21, s63
    """)
    for r in list(range(XF+16, XF+32)) + list(range(WF+20, ACC + 80)):
        A(f"v_mov_b32 v{r}, 0")
    A("s_cmp_eq_u32 s28, 2")
    A("s_cbranch_scc1 A_preV")
    A(f"""
    v_lshl_add_u32 v{RA0}, v12, 7, v{RA0}
    v_xor_b32 v{RA0+1}, 64, v{RA0}
    v_and_b32 v7, 3, v2
    v_mul_u32_u24 v5, 40, v7
    v_add3_u32 v{RB4}, v{RB}, v5, 32
    v_bfe_u32 v5, v2, 1, 1
    v_mul_u32_u24 v5, 40, v5
    v_and_b32 v6, 1, v2
    v_lshl_add_u32 v5, v6, 4, v5
    v_add_u32 v{RB}, v{RB}, v5
    s_add_u32 s46, s28, 1
    s_mul_i32 s45, s46, 81920
    s_mul_i32 s46, s46, 1280
    s_cmp_eq_u32 s28, 0
    s_cselect_b32 s47, {QF}, {KV}
    s_lshl_b32 s43, s43, 1
    s_mul_i32 s43, s43, s46
    s_add_u32 s43, s43, s47
    s_lshl_b32 s10, s3, 2
    s_mul_i32 s10, s10, s45
    s_add_u32 s43, s43, s10
    s_add_u32 s44, s43, s46
    v_mul_lo_u32 v5, v4, s45
    v_bfe_u32 v6, v2, 4, 1
    v_lshl_add_u32 v5, v6, 9, v5
    v_lshl_add_u32 v{SAD}, v12, 4, v5
    s_lshl_b32 s10, s45, 1
    v_add_u32 v{SAD+1}, s10, v{SAD}           ; heads 2,3
    v_mul_lo_u32 v5, v13, s45
    v_lshl_add_u32 v{SAD+2}, v12, 3, v5
    """)
    stamp(A,1); stamp(A,2)
    def loop(vmode, lab):
        xo = (0, 1024, 4096, 5120) if vmode else (0, 2048, 4096, 6144)
        wo = [(RB, 32*j) for j in range(5)] if vmode else [(RB, 0), (RB, 8), (RB, 80), (RB, 88), (RB4, 0)]
        accof = (lambda tt, j: ACC + 40*(tt >> 1) + 8*j + 4*(tt & 1)) if vmode else (lambda tt, j: ACC + 20*tt + 4*j)
        def body(emit, q, last=False):
            steps = [(0,0,1),(1,1,0)] if not last else [(None,None,1)]
            for ks, bn, bc in steps:
                rds = []
                if ks is not None:
                    for j in range(5):
                        r, o = wo[j]
                        rds.append((f"w{bn}", f"ds_read_b64_tr_b16 {vr(WF+20*bn+4*j,2)}, v{r} offset:{ks*5120+o}"))
                        rds.append((f"w{bn}", f"ds_read_b64_tr_b16 {vr(WF+20*bn+4*j+2,2)}, v{r} offset:{ks*5120+o+1280}"))
                    for tt in range(4):
                        rds.append((f"x{bn}{tt}", f"ds_read_b128 {vr(XF+16*bn+4*tt,4)}, v{RA0+ks} offset:{xo[tt]}"))
                n = 0
                for tt in range(4):
                    idx = [i for i, t in enumerate(q) if t == f"x{bc}{tt}"]
                    if idx:
                        cnt = len(q) - 1 - max(idx)
                        assert cnt <= 15
                        emit(f"s_waitcnt lgkmcnt({cnt})")
                        del q[:max(idx)+1]
                    for j in range(5):
                        acc = vr(accof(tt, j), 4)
                        x = vr(XF+16*bc+4*tt, 4); w = vr(WF+20*bc+4*j, 4)
                        emit(f"v_mfma_f32_16x16x32_bf16 {acc}, {x}, {w}, {acc}" if vmode else f"v_mfma_f32_16x16x32_bf16 {acc}, {w}, {x}, {acc}")
                        if rds:
                            t, ins = rds.pop(0); emit(ins); q.append(t)
                        n += 1
                        if ks == 0 and n == 16:
                            emit(f"s_add_u32 s34, s34, 1\ns_add_u32 s37, s37, 1\ns_cmp_eq_u32 s37, {NST}\ns_cselect_b32 s35, {(-(NST-1)*STG) & 0xffffffff:#x}, s36\ns_cselect_b32 s37, 0, s37")
                        if ks == 1 and n >= 16 and n < 20: emit(f"v_add_u32 v{8+n-16}, s35, v{8+n-16}")
                if ks == 1:
                    emit("s_cmp_lt_u32 s34, 10\ns_waitcnt lgkmcnt(0)"); del q[:]
        A("s_mov_b32 s37, 0")
        A(f"{lab}:")
        A("s_barrier")
        q = []
        body(A, q)
        A(f"s_cbranch_scc1 {lab}")
        body(A, q, last=True)
        stamp(A,3)
    def pick():
        A(f"""
        v_mov_b32 v7, {TAB+4608}
        ds_read_b128 v[12:15], v7
        """)
    loop(0, "A_loopQ")
    CSR, AB = 176, 16
    A(f"""
    s_lshl_b32 s10, s24, 9
    s_add_u32 s10, s10, {TAB+2048}
    v_lshl_add_u32 v5, v12, 3, s10
    v_mul_u32_u24 v6, 80, v4
    v_bfe_u32 v7, v2, 4, 1
    v_lshl_add_u32 v6, v7, 5, v6
    v_add_u32 v6, {TAB+4096}, v6
    v_mul_u32_u24 v1, 80, v13
    v_add_u32 v1, {TAB+4096+64}, v1
    s_barrier
    ds_read_b128 {vr(CSR,4)}, v6
    ds_read_b128 {vr(CSR+4,4)}, v6 offset:16
    ds_read_b128 {vr(CSR+8,4)}, v6 offset:160
    ds_read_b128 {vr(CSR+12,4)}, v6 offset:176
    ds_read_b128 {vr(CSR+16,4)}, v1
    """)
    for tt in range(4): A(f"ds_read_b64 {vr(AB+2*tt,2)}, v5 offset:{128*tt}")
    pick()
    T = 24
    for tt in range(4):
        A(f"s_waitcnt lgkmcnt({4-tt})")
        ab = vr(AB+2*tt, 2); base = ACC + 20*tt
        for e in range(0, 20, 2): A(f"v_pk_mul_f32 {vr(T+e,2)}, {ab}, {vr(CSR+e,2)} op_sel:[1,0] op_sel_hi:[1,1]")
        for e in range(0, 20, 2): A(f"v_pk_fma_f32 {vr(base+e,2)}, {vr(base+e,2)}, {ab}, {vr(T+e,2)} op_sel_hi:[1,0,1]")
        for e in range(10): A(f"v_cvt_pk_bf16_f32 v{base+e}, v{base+2*e}, v{base+2*e+1}")
        so = f"s{43+(tt>>1)}"
        A(f"buffer_store_dwordx4 {vr(base,4)}, v{SAD}, s[20:23], {so} offen offset:{256*(tt&1)}")
        A(f"buffer_store_dwordx4 {vr(base+4,4)}, v{SAD+1}, s[20:23], {so} offen offset:{256*(tt&1)}")
        A(f"buffer_store_dwordx2 {vr(base+8,2)}, v{SAD+2}, s[20:23], {so} offen offset:{1024+128*(tt&1)}")
    A("s_branch A_cdone")
    A("A_preV:")
    A(f"""
    v_and_b32 v5, 7, v2
    v_bfe_u32 v6, v2, 3, 1
    v_lshl_add_u32 v5, v6, 4, v5
    v_lshl_add_u32 v{RA0}, v5, 7, v{RA0}
    v_xor_b32 v{RA0+1}, 64, v{RA0}
    v_and_b32 v7, 3, v2
    v_lshl_add_u32 v{RB}, v7, 3, v{RB}
    v_mov_b32 v{RB4}, 0
    s_mul_i32 s43, s43, 5120
    s_add_u32 s43, s43, {KV}
    s_mul_i32 s10, s3, {4*163840}
    s_add_u32 s43, s43, s10
    s_mov_b32 s45, 163840
    v_mul_u32_u24 v14, 320, v13
    v_add_u32 v14, 1280, v14
    """)
    for j in range(5):
        A(f"""
        v_add_u32 v5, {16*j}, v12
        v_mul_u32_u24 v6, 205, v5
        v_lshrrev_b32 v6, 12, v6
        v_mul_u32_u24 v7, 20, v6
        v_sub_u32 v5, v5, v7
        v_mul_lo_u32 v6, v6, s45
        v_lshl_add_u32 v5, v5, 4, v14
        v_add_u32 v{SAD+j}, v5, v6
        """)
    stamp(A,1); stamp(A,2)
    loop(1, "A_loopV")
    AT, BT, CV = 176, 192, 208
    A(f"""
    v_lshlrev_b32 v5, 2, v12
    v_add_u32 v5, {TAB+4096}, v5
    s_lshl_b32 s10, s24, 8
    s_add_u32 s10, s10, {TAB}
    v_lshl_add_u32 v6, v4, 6, s10
    v_bfe_u32 v7, v2, 4, 1
    v_lshl_add_u32 v6, v7, 4, v6
    s_barrier
    """)
    for j in range(5): A(f"ds_read_b32 v{CV+2*j}, v5 offset:{64*j}")
    for kb in range(2):
        for ab_ in range(2):
            A(f"ds_read_b128 {vr(AT+8*kb+4*ab_,4)}, v6 offset:{128*kb+32*ab_}")
            A(f"ds_read_b128 {vr(BT+8*kb+4*ab_,4)}, v6 offset:{1024+128*kb+32*ab_}")
    pick()
    for kb in range(2):
        A(f"s_waitcnt lgkmcnt({5-4*kb})")
        for j in range(5):
            base = ACC + 40*kb + 8*j
            tmp = 24 + 8*(j & 1)
            for e in range(4): A(f"v_pk_mul_f32 {vr(tmp+2*e,2)}, {vr(BT+8*kb+2*e,2)}, {vr(CV+2*j,2)} op_sel_hi:[1,0]")
            for e in range(4): A(f"v_pk_fma_f32 {vr(base+2*e,2)}, {vr(base+2*e,2)}, {vr(AT+8*kb+2*e,2)}, {vr(tmp+2*e,2)}")
            for e in range(4): A(f"v_cvt_pk_bf16_f32 v{base+e}, v{base+2*e}, v{base+2*e+1}")
            A(f"buffer_store_dwordx4 {vr(base,4)}, v{SAD+j}, s[20:23], s43 offen offset:{2560*kb}")
    A("A_cdone:")
    stamp(A,4)
    A(f"""
    s_waitcnt lgkmcnt(0)
    v_readfirstlane_b32 s{S_TAG}, v12
    v_readfirstlane_b32 s{S_TAG+1}, v13
    v_readfirstlane_b32 s{S_MODE}, v14
    s_nop 1
    """)
    signal(A, "A_sig", "s48")
    A("s_branch F_main")
    RL = 131072
    A(f"""
    A_pack:
    s_load_dwordx4 s[44:47], s[0:1], 32
    s_load_dwordx2 s[48:49], s[0:1], 48       ; down
    s_load_dwordx2 s[50:51], s[0:1], 16       ; wo
    s_sub_u32 s26, s2, 192
    v_lshrrev_b32 v8, 3, v2
    v_and_b32 v9, 7, v2
    v_lshlrev_b32 v9, 4, v9
    v_mul_u32_u24 v10, 3840, v8
    v_add_u32 v10, v10, v9
    s_lshr_b32 s10, s26, 1
    s_lshl_b32 s32, s10, 7
    s_and_b32 s11, s26, 1
    s_mul_i32 s11, s11, 320
    s_mul_i32 s33, s24, 40
    s_add_u32 s11, s11, s33
    s_mul_i32 s11, s11, 3840
    s_add_u32 s32, s32, s11
    s_cmp_ge_u32 s26, 60
    s_cselect_b32 s32, 0x40000000, s32
    s_waitcnt lgkmcnt(0)
    s_mov_b32 s12, s4
    s_mov_b32 s13, s5
    s_mov_b32 s16, s6
    s_mov_b32 s17, s7
    s_mov_b32 s20, s62
    s_mov_b32 s21, s63
    """)
    for i in range(5):
        A(f"buffer_load_dwordx4 {vr(44+4*i,4)}, v10, s[16:19], s32 offen")
        A(f"s_add_u32 s32, s32, {8*3840}")
    dbg_srd(None)
    A("s_cmp_lt_u32 s24, 4")
    A("s_cbranch_scc1 A_p0")
    stats_load()
    A("A_p0:")
    tag_load()
    A(f"""
    v_mul_u32_u24 v11, 3072, v8
    v_add_u32 v11, v11, v9
    v_mul_u32_u24 v12, 1280, v8
    v_add_u32 v12, v12, v9
    v_lshrrev_b32 v13, 2, v8
    v_mul_u32_u24 v13, 40, v13
    v_and_b32 v14, 3, v8
    v_add_u32 v13, v13, v14
    v_add_u32 v13, 16, v13
    v_mul_u32_u24 v13, 1280, v13
    v_add_u32 v13, v13, v9
    s_lshl_b32 s40, s24, 6
    s_add_u32 s40, s40, s26
    s_lshl_b32 s41, s24, 14
    s_mov_b32 s64, s40
    s_mov_b32 s65, s41
    s_mov_b32 s31, 0x20000
    v_bfe_u32 v5, v2, 2, 2
    v_bfe_u32 v7, v2, 4, 1
    v_and_b32 v8, 3, v2
    v_lshl_add_u32 v14, v4, 3, v5
    v_lshlrev_b32 v14, 7, v14
    v_lshl_add_u32 v14, v7, 11, v14
    v_lshl_add_u32 v14, v8, 3, v14
    v_lshl_add_u32 v15, v7, 2, v5
    v_lshl_add_u32 v15, v4, 4, v15
    v_lshlrev_b32 v15, 7, v15
    v_lshl_add_u32 v15, v8, 3, v15
    v_lshlrev_b32 v1, 4, v2
    s_branch A_pm
    A_p1:
    s_mov_b32 m0, s41
    s_cmp_lt_u32 s40, 960
    s_cbranch_scc0 A_p2
    s_mul_i32 s10, s40, 2731
    s_lshr_b32 s10, s10, 16                   ; ks16 = T/24
    s_mul_i32 s11, s10, 24
    s_sub_u32 s11, s40, s11
    s_mul_i32 s10, s10, {16*3072}
    s_lshl_b32 s11, s11, 7
    s_add_u32 s10, s10, s11
    s_add_u32 s11, s10, {8*3072-1024}
    s_mov_b32 s28, s44
    s_mov_b32 s29, s45
    s_mov_b32 s30, {640*1536*2}
    buffer_load_dwordx4 v11, s[28:31], s10 offen lds
    buffer_load_dwordx4 v11, s[28:31], s11 offen offset:1024 lds
    s_add_u32 m0, s41, 2048
    s_mov_b32 s28, s46
    s_mov_b32 s29, s47
    buffer_load_dwordx4 v11, s[28:31], s10 offen lds
    buffer_load_dwordx4 v11, s[28:31], s11 offen offset:1024 lds
    s_branch A_p5
    A_p2:
    s_sub_u32 s42, s40, 960
    s_mul_i32 s10, s42, 6554
    s_lshr_b32 s10, s10, 16                   ; ks32 (0..67)
    s_mul_i32 s11, s10, 10
    s_sub_u32 s11, s42, s11
    s_lshl_b32 s11, s11, 7
    s_cmp_lt_u32 s10, 48
    s_cbranch_scc0 A_p3
    s_mul_i32 s10, s10, {32*1280}
    s_add_u32 s10, s10, s11
    s_mov_b32 s28, s48
    s_mov_b32 s29, s49
    s_mov_b32 s30, {1536*640*2}
    s_mov_b32 s42, {16*1280-2048}
    s_branch A_p4
    A_p3:
    s_mov_b32 s28, s50
    s_mov_b32 s29, s51
    s_mov_b32 s30, {640*640*2}
    s_cmp_lt_u32 s10, 64
    s_cbranch_scc0 A_p6
    s_sub_u32 s10, s10, 48
    s_mul_i32 s10, s10, {40*1280}
    s_add_u32 s10, s10, s11
    s_mov_b32 s42, {20*1280-2048}
    A_p4:
    s_add_u32 s11, s10, {8*1280-1024}
    buffer_load_dwordx4 v12, s[28:31], s10 offen lds
    buffer_load_dwordx4 v12, s[28:31], s11 offen offset:1024 lds
    s_add_u32 s10, s10, s42
    s_add_u32 s11, s11, s42
    buffer_load_dwordx4 v12, s[28:31], s10 offen offset:2048 lds
    buffer_load_dwordx4 v12, s[28:31], s11 offen offset:3072 lds
    s_branch A_p5
    A_p6:
    s_sub_u32 s10, s10, 64
    s_mul_i32 s10, s10, {160*1280}
    s_add_u32 s10, s10, s11
    s_add_u32 s11, s10, {20*1280-1024}
    buffer_load_dwordx4 v13, s[28:31], s10 offen lds
    buffer_load_dwordx4 v13, s[28:31], s11 offen offset:1024 lds
    s_add_u32 s10, s10, {80*1280-2048}
    s_add_u32 s11, s11, {80*1280-2048}
    buffer_load_dwordx4 v13, s[28:31], s10 offen offset:2048 lds
    buffer_load_dwordx4 v13, s[28:31], s11 offen offset:3072 lds
    A_p5:
    s_add_u32 s40, s40, 512
    s_add_u32 s41, s41, 4096
    s_setpc_b64 s[34:35]
    A_q1:
    s_cmp_lt_u32 s64, 960
    s_cbranch_scc0 A_q2
    s_mul_i32 s10, s64, 2731
    s_lshr_b32 s10, s10, 16
    s_mul_i32 s11, s10, 24
    s_sub_u32 s42, s64, s11
    s_mul_i32 s43, s10, 3072
    s_add_u32 s43, s43, {WGP}
    s_mov_b32 s66, 3
    s_mov_b32 s67, 342
    s_mov_b32 s68, 122880
    v_add_u32 v5, s65, v14
    v_add_u32 v6, 512, v5
    s_branch A_q4
    A_q2:
    s_sub_u32 s42, s64, 960
    s_mul_i32 s10, s42, 6554
    s_lshr_b32 s10, s10, 16
    s_mul_i32 s11, s10, 10
    s_sub_u32 s42, s42, s11
    s_mul_i32 s43, s10, 5120
    s_mov_b32 s66, 5
    s_mov_b32 s67, 205
    s_mov_b32 s68, 245760
    s_add_u32 s43, s43, {WDP}
    s_cmp_lt_u32 s10, 48
    s_cbranch_scc1 A_q3
    s_mov_b32 s68, 102400
    s_add_u32 s43, s43, {WOP-WDP-48*5120}
    A_q3:
    v_add_u32 v5, s65, v15
    v_add_u32 v6, 1024, v5
    A_q4:
    s_lshl_b32 s42, s42, 2
    """)
    PR = 128
    for t in range(4):
        A(f"ds_read_b64_tr_b16 {vr(PR+4*t,2)}, v5 offset:{32*t}")
        A(f"ds_read_b64_tr_b16 {vr(PR+2+4*t,2)}, v6 offset:{32*t}")
    for t in range(4):
        A(f"""
        s_add_u32 s10, s42, {t}
        s_mul_i32 s11, s10, s67
        s_lshr_b32 s11, s11, 10
        s_mul_i32 s32, s11, s66
        s_sub_u32 s10, s10, s32
        s_lshl_b32 s10, s10, 10
        s_mul_i32 s11, s11, s68
        s_add_u32 s10, s10, s11
        s_add_u32 s10, s10, s43
        s_waitcnt lgkmcnt({6-2*t})
        buffer_store_dwordx4 {vr(PR+4*t,4)}, v1, s[20:23], s10 offen sc1
        """)
    A(f"""
    s_add_u32 s64, s64, 512
    s_add_u32 s65, s65, 4096
    s_setpc_b64 s[34:35]
    A_pm:
    s_waitcnt vmcnt(0)
    s_call_b64 s[34:35], A_p1
    s_waitcnt vmcnt(4)
    """)
    tag_check("A_tk2")
    die_store("A_ds2", 1)
    for e in range(8): A(f"v_mov_b32 v{64+e}, 0")
    for d in range(20):
        e = 2*(d % 4)
        A(f"v_lshlrev_b32 v5, 16, v{44+d}")
        A(f"v_and_b32 v6, 0xffff0000, v{44+d}")
        A(f"v_add_f32 v{64+e}, v{64+e}, v5")
        A(f"v_add_f32 v{65+e}, v{65+e}, v6")
    A("s_nop 1")
    for e in range(8): A(f"v_add_f32_dpp v{64+e}, v{64+e}, v{64+e} row_ror:8 row_mask:0xf bank_mask:0xf")
    for e in range(8): A(f"v_mov_b32 v{72+e}, v{64+e}")
    A("s_nop 1")
    for e in range(8): A(f"v_permlane16_swap_b32 v{64+e}, v{72+e}")
    A("s_nop 1")
    for e in range(8): A(f"v_add_f32 v{64+e}, v{64+e}, v{72+e}")
    for e in range(8): A(f"v_mov_b32 v{72+e}, v{64+e}")
    A("s_nop 1")
    for e in range(8): A(f"v_permlane32_swap_b32 v{64+e}, v{72+e}")
    A("s_nop 1")
    for e in range(8): A(f"v_add_f32 v{64+e}, v{64+e}, v{72+e}")
    A(f"""
    s_lshl_b32 s10, s24, 8
    s_add_u32 s10, s10, {RL}
    v_lshl_add_u32 v5, v9, 1, s10
    ds_write_b128 v5, v[64:67]
    ds_write_b128 v5, v[68:71] offset:16
    s_cmp_lt_u32 s24, 4
    s_cbranch_scc1 A_p8
    """)
    stats_calc()
    A(f"""
    A_p8:
    s_waitcnt lgkmcnt(0)
    s_barrier
    s_cmp_lg_u32 s24, 0
    s_cbranch_scc1 A_p7
    s_cmp_ge_u32 s26, 60
    s_cbranch_scc1 A_p7
    v_lshlrev_b32 v5, 3, v3
    v_add_u32 v5, {RL}, v5
    """)
    for w in range(8): A(f"ds_read_b64 {vr(64+2*w,2)}, v5 offset:{256*w}")
    A(f"""
    s_lshr_b32 s10, s26, 1
    s_lshl_b32 s10, s10, 9
    s_and_b32 s11, s26, 1
    s_mul_i32 s11, s11, {960*16}
    s_add_u32 s10, s10, s11
    s_add_u32 s10, s10, {CSQ}
    v_lshlrev_b32 v5, 4, v3
    s_waitcnt lgkmcnt(0)
    v_pk_add_f32 v[64:65], v[64:65], v[72:73]
    v_pk_add_f32 v[66:67], v[66:67], v[74:75]
    v_pk_add_f32 v[68:69], v[68:69], v[76:77]
    v_pk_add_f32 v[70:71], v[70:71], v[78:79]
    v_pk_add_f32 v[64:65], v[64:65], v[68:69]
    v_pk_add_f32 v[66:67], v[66:67], v[70:71]
    v_pk_add_f32 v[22:23], v[64:65], v[66:67]
    s_mov_b32 exec_hi, 0
    buffer_store_dwordx4 v[22:25], v5, s[20:23], s10 offen sc1
    s_mov_b32 exec_hi, -1
    A_p7:
    s_call_b64 s[34:35], A_p1
    s_call_b64 s[34:35], A_p1
    s_cmp_ge_u32 s40, 1640
    s_cbranch_scc1 A_p9
    s_call_b64 s[34:35], A_p1
    s_waitcnt vmcnt(12)
    s_call_b64 s[34:35], A_q1
    A_p9:
    s_waitcnt vmcnt(8)
    s_call_b64 s[34:35], A_q1
    s_waitcnt vmcnt(8)
    s_call_b64 s[34:35], A_q1
    s_waitcnt vmcnt(8)
    s_call_b64 s[34:35], A_q1
    """)
    die_addr()
    A(f"""
    s_mov_b32 s11, 0x40000
    A_pd:
    buffer_load_dwordx4 v[36:39], v16, s[20:23], s38 offen sc1
    s_sub_u32 s11, s11, 1
    s_waitcnt vmcnt(0)
    s_cmp_eq_u32 s11, 0
    s_cbranch_scc1 A_pd2
    v_cmp_ne_u64 vcc, s[{S_TAG}:{S_TAG+1}], v[36:37]
    s_cbranch_vccnz A_pd
    A_pd2:
    """)
    die_mode()
    A(f"""
    s_lshl_b32 s10, s26, 7
    s_add_u32 s10, s10, {FP}
    s_barrier
    s_cmp_lg_u32 s24, 0
    s_cbranch_scc1 A_pe
    s_mov_b64 exec, 1
    buffer_store_dwordx2 v[24:25], v18, s[20:23], s10 offen sc1
    s_mov_b64 exec, -1
    A_pe:
    """)
    stamp(A,1); stamp(A,2); stamp(A,3); stamp(A,4)
    assert all((T*2731)>>16 == T//24 for T in range(960))
    assert all((T*6554)>>16 == T//10 for T in range(680))
    assert all((e*205)>>12 == e//20 for e in range(320))
    assert all((i*11)>>5 == i//3 for i in range(24))
```
